```python
import torch

def _softmax(x, axis=-1):
    return torch.softmax(x, dim=axis)
def _gelu(x):
    return torch.nn.functional.gelu(x, approximate="tanh")
def _silu(x):
    return torch.nn.functional.silu(x)
def _sigmoid(x):
    return torch.sigmoid(x)
def _layernorm(x, axis=-1, eps=1e-5):
    m = x.mean(dim=axis, keepdim=True)
    v = x.var(dim=axis, keepdim=True, unbiased=False)
    return (x - m) / torch.sqrt(v + eps)
def _scatter_add(tgt, idx, src, axis=0):
    return tgt.clone().index_add_(axis, idx, src)
def _segment_sum(src, seg, n):
    out = torch.zeros((n,) + src.shape[1:], dtype=src.dtype)
    return out.index_add_(0, seg, src)
def _pad(x, pw):
    flat = tuple(v for pair in reversed(pw) for v in pair)
    return torch.nn.functional.pad(x, flat)

kernel_name = 'parallel_sum__compressed_kv_cla__dense_activation_squared_relu__prompt'

def setup_inputs():

    _w = (lambda a: (lambda t: t.to(torch.bfloat16) if t.is_floating_point() else t)(torch.as_tensor(a)))
    def _A_setup():
        B, H, Sq, Sk, D, M = 1, 32, 2048, 2048, 128, 512
        Dc = 4 * D
        return {
            "x": _w((lambda *s: torch.randn(*s, dtype=torch.bfloat16) * 0.05)(B, Sq, M)),
            "c_kv": _w((lambda *s: torch.randn(*s, dtype=torch.bfloat16) * 1.6)(B, Sk, Dc)),
            "w_q": _w((lambda *s: torch.randn(*s, dtype=torch.bfloat16) * 1.6)(M, H, D) * (M ** -0.5)),
            "w_uk": _w((lambda *s: torch.randn(*s, dtype=torch.bfloat16) * 1.6)(Dc, H, D) * (Dc ** -0.5)),
            "w_uv": _w((lambda *s: torch.randn(*s, dtype=torch.bfloat16) * 1.6)(Dc, H, D) * (Dc ** -0.5)),
            "w_o": _w((lambda *s: torch.randn(*s, dtype=torch.bfloat16) * 1.6)(H, D, M) * ((H * D) ** -0.5)),
        }
    _A_in = _A_setup()

    def _B_setup():
        B, S, D, F = 1, 2048, 512, 1792
        return {
            "x": _w((lambda *s: torch.randn(*s, dtype=torch.bfloat16) * 0.05)(B, S, D)),
            "w1": _w((lambda *s: torch.randn(*s, dtype=torch.bfloat16) * 0.05)(D, F)),
            "b1": _w((lambda *s: torch.randn(*s, dtype=torch.bfloat16) * 0.4)(F)),
            "w2": _w((lambda *s: torch.randn(*s, dtype=torch.bfloat16) * 0.05)(F, D)),
            "b2": _w((lambda *s: torch.randn(*s, dtype=torch.bfloat16) * 1.6)(D)),
        }
    _B_in = _B_setup()

    return {
        "A_x": _A_in["x"],
        "A_c_kv": _A_in["c_kv"],
        "A_w_q": _A_in["w_q"],
        "A_w_uk": _A_in["w_uk"],
        "A_w_uv": _A_in["w_uv"],
        "A_w_o": _A_in["w_o"],
        "B_x": _B_in["x"],
        "B_w1": _B_in["w1"],
        "B_b1": _B_in["b1"],
        "B_w2": _B_in["w2"],
        "B_b2": _B_in["b2"],
    }

def reference(A_x, A_c_kv, A_w_q, A_w_uk, A_w_uv, A_w_o, B_x, B_w1, B_b1, B_w2, B_b2):
    def _A_ref(x, c_kv, w_q, w_uk, w_uv, w_o):
        B, Sq, M = x.shape[0], x.shape[1], x.shape[2]
        Sk = c_kv.shape[1]
        H, D = w_q.shape[1], w_q.shape[2]
        q = torch.einsum("bqm,mhd->bhqd", x, w_q)
        k = torch.einsum("bkc,chd->bhkd", c_kv, w_uk)
        v = torch.einsum("bkc,chd->bhkd", c_kv, w_uv)
        scores = torch.einsum("bhqd,bhkd->bhqk", q, k) * (D ** -0.5)
        off = Sk - Sq
        qi = torch.arange(Sq)[:, None]
        kj = torch.arange(Sk)[None, :]
        cmask = kj <= (qi + off)
        scores = torch.where(cmask[None, None], scores, -1e9)
        p = _softmax(scores, axis=-1)
        ctx = torch.einsum("bhqk,bhkd->bhqd", p, v)
        return torch.einsum("bhqd,hdm->bqm", ctx, w_o)

    def _B_ref(x, w1, b1, w2, b2):
        h = torch.einsum("bsd,df->bsf", x, w1) + b1
        zero = torch.zeros_like(h)
        r = torch.where(h > zero, h, zero)
        h = r * r
        out = torch.einsum("bsf,fd->bsd", h, w2) + b2
        return out

    x = A_x
    xn = _layernorm(x, axis=-1)
    return x + _A_ref(xn, A_c_kv, A_w_q, A_w_uk, A_w_uv, A_w_o) + _B_ref(xn, B_w1, B_b1, B_w2, B_b2)
```

```python
import re

REG_RE = re.compile(r'^(v|a|s)(\d+)$')
RANGE_RE = re.compile(r'^(v|a|s)\[(\d+):(\d+)\]$')

TRANS = ('v_exp_f32', 'v_log_f32', 'v_rcp_f32', 'v_rsq_f32', 'v_sqrt_f32', 'v_sin_f32', 'v_cos_f32')


def regs_of(tok):
    tok = tok.strip()
    neg = tok.startswith('-')
    if neg:
        tok = tok[1:]
    m = re.match(r'^abs\((.*)\)$', tok)
    if m:
        tok = m.group(1)
    m = REG_RE.match(tok)
    if m:
        return {(m.group(1), int(m.group(2)))}
    m = RANGE_RE.match(tok)
    if m:
        return {(m.group(1), i) for i in range(int(m.group(2)), int(m.group(3)) + 1)}
    if tok == 'vcc':
        return {('s', 106), ('s', 107)}
    if tok == 'vcc_lo':
        return {('s', 106)}
    if tok == 'vcc_hi':
        return {('s', 107)}
    if tok == 'm0':
        return {('m0', 0)}
    if tok == 'exec':
        return {('exec', 0)}
    return set()


class Ins:
    __slots__ = ('text', 'mn', 'ops', 'mods', 'rd', 'wr', 'kind', 'passes', 'srcc', 'ab', 'nop')

    def __init__(self, text):
        self.text = text
        t = text.split(';')[0].strip()
        parts = t.split(None, 1)
        self.mn = parts[0]
        rest = parts[1] if len(parts) > 1 else ''
        extra_mods = re.findall(r'\b(?:neg_lo|neg_hi|op_sel|op_sel_hi|quad_perm):\[[^\]]*\]', rest)
        rest = re.sub(r'\b(?:neg_lo|neg_hi|op_sel|op_sel_hi|quad_perm):\[[^\]]*\]', '', rest).strip()
        ops = [o.strip() for o in rest.split(',')] if rest else []
        mods = []
        if ops:
            last = ops[-1].split()
            if last:
                ops[-1] = last[0]
                mods = last[1:]
        self.ops = ops
        self.mods = mods + extra_mods
        self.rd = set()
        self.wr = set()
        self.kind = 'other'
        self.passes = 0
        self.srcc = set()
        self.ab = set()
        self.nop = 1
        mn = self.mn
        R = regs_of
        if mn == 's_nop':
            self.kind = 'nop'
            self.nop = int(ops[0], 0) + 1
        elif mn.startswith('v_mfma'):
            self.kind = 'mfma'
            self.passes = 8 if '32x32' in mn else 4
            self.wr = R(ops[0])
            self.ab = R(ops[1]) | R(ops[2])
            self.srcc = R(ops[3])
            self.rd = self.ab | self.srcc
        elif mn.startswith('v_cmp'):
            self.kind = 'valu'
            self.wr = R(ops[0])
            for o in ops[1:]:
                self.rd |= R(o)
        elif mn in ('v_readfirstlane_b32', 'v_readlane_b32'):
            self.kind = 'valu'
            self.wr = R(ops[0])
            for o in ops[1:]:
                self.rd |= R(o)
        elif mn.startswith('v_permlane') and 'swap' in mn:
            self.kind = 'valu'
            self.wr = R(ops[0]) | R(ops[1])
            self.rd = set(self.wr)
        elif mn.startswith('v_'):
            self.kind = 'valu'
            self.wr = R(ops[0])
            k = 1
            if mn.startswith(('v_add_co', 'v_sub_co', 'v_addc_co', 'v_subb_co', 'v_subrev_co')):
                self.wr |= R(ops[1])
                k = 2
            for o in ops[k:]:
                self.rd |= R(o)
            if mn.startswith(('v_fmac', 'v_pk_fmac', 'v_dot2c')):
                self.rd |= R(ops[0])
            if mn.startswith('v_cndmask') and len(ops) == 3:
                self.rd |= R('vcc')
        elif mn.startswith('ds_'):
            self.kind = 'ds'
            if mn.startswith(('ds_read', 'ds_swizzle', 'ds_bpermute', 'ds_permute')):
                self.wr = R(ops[0])
                for o in ops[1:]:
                    self.rd |= R(o)
            else:
                for o in ops:
                    self.rd |= R(o)
        elif mn.startswith(('buffer_', 'global_')):
            self.kind = 'vmem'
            if 'load' in mn and 'lds' not in mods:
                self.wr = R(ops[0])
                for o in ops[1:]:
                    self.rd |= R(o)
            else:
                for o in ops:
                    self.rd |= R(o)
                if 'lds' in mods:
                    self.rd |= {('m0', 0)}
        elif mn.startswith('s_'):
            self.kind = 'salu'
            if mn.startswith(('s_cmp', 's_cbranch', 's_branch', 's_waitcnt', 's_barrier', 's_endpgm', 's_setprio', 's_sleep')):
                for o in ops:
                    self.rd |= R(o)
            else:
                if ops:
                    self.wr = R(ops[0])
                for o in ops[1:]:
                    self.rd |= R(o)

    def is_trans(self):
        return self.mn.split('_e')[0] in TRANS or self.mn in TRANS

    def wide_store(self):
        return self.kind == 'vmem' and 'store' in self.mn and ('x3' in self.mn or 'x4' in self.mn)

    def store_data(self):
        return regs_of(self.ops[0]) if self.kind == 'vmem' and 'store' in self.mn else set()


def vg(s):
    return {r for r in s if r[0] in ('v', 'a')}


def sg(s):
    return {r for r in s if r[0] == 's'}


def required(p, c):
    n = 0
    if p.kind == 'valu':
        pv = vg(p.wr)
        ps = sg(p.wr)
        if c.kind == 'mfma' and pv & c.rd:
            n = max(n, 2)
        if ps:
            if c.kind == 'valu' and ps & c.rd:
                n = max(n, 4 if c.mn in ('v_readlane_b32', 'v_writelane_b32') else 2)
            if c.kind == 'vmem' and ps & c.rd:
                n = max(n, 5)
        if c.mn in ('v_readfirstlane_b32', 'v_readlane_b32') and pv & c.rd:
            n = max(n, 1)
        if p.is_trans() and c.kind == 'valu' and not c.is_trans() and pv & (c.rd | c.wr):
            n = max(n, 1)
        if c.mn.startswith('v_permlane') and pv & c.rd:
            n = max(n, 2)
        if c.kind == 'valu' and any(m.startswith(('row_', 'quad_perm', 'wave_')) for m in c.mods) and pv & c.rd:
            n = max(n, 2)
    elif p.kind == 'mfma':
        big = p.passes == 8
        if c.kind == 'mfma':
            if p.wr & c.ab:
                n = max(n, 12 if big else 8)
            if p.wr & c.srcc:
                if p.wr == c.srcc and p.passes == c.passes:
                    n = max(n, 0)
                else:
                    n = max(n, 10 if big else 6)
        elif c.kind in ('valu', 'vmem', 'ds'):
            if p.wr & (c.rd | c.wr):
                n = max(n, 12 if big else 8)
            if c.kind == 'valu' and p.srcc & c.wr:
                n = max(n, 7 if big else 3)
    elif p.kind == 'salu':
        if ('m0', 0) in p.wr and c.kind == 'vmem' and 'lds' in c.mods:
            n = max(n, 1)
    elif p.kind == 'vmem' and p.wide_store():
        if p.store_data() & c.wr:
            n = max(n, 2 if c.kind == 'valu' else 1)
    return n


class Asm:
    def __init__(self):
        self.lines = []
        self.vm = []
        self.lg = []

    def raw(self, text):
        self.lines.append(('t', text))

    def label(self, name):
        self.lines.append(('l', name))

    def __call__(self, text, tag=None):
        for ln in text.strip().split('\n'):
            ln = ln.strip()
            if not ln or ln.startswith(';'):
                continue
            ins = Ins(ln)
            self.lines.append(('i', ins))
            if ins.kind == 'vmem':
                self.vm.append(tag)
            elif ins.kind == 'ds':
                self.lg.append(tag)

    def wait_vm(self, tag):
        idx = max(i for i, t in enumerate(self.vm) if t == tag)
        n = len(self.vm) - 1 - idx
        assert n <= 63
        self(f's_waitcnt vmcnt({n})')
        self.vm = self.vm[idx + 1:]

    def wait_lg(self, tag):
        idx = max(i for i, t in enumerate(self.lg) if t == tag)
        n = len(self.lg) - 1 - idx
        assert n <= 15, n
        self(f's_waitcnt lgkmcnt({n})')
        self.lg = self.lg[idx + 1:]

    def reset_counters(self):
        self.vm = []
        self.lg = []

    def finalize(self):
        out = []
        hist = []
        pos = 0
        for kind, x in self.lines:
            if kind != 'i':
                out.append((kind, x))
                continue
            need = 0
            for p, ppos in hist:
                r = required(p, x)
                if r:
                    dist = pos - ppos - 1
                    if dist < r:
                        need = max(need, r - dist)
            while need > 0:
                k = min(need, 16)
                nop = Ins(f's_nop {k - 1}')
                out.append(('i', nop))
                pos += k
                need -= k
            out.append(('i', x))
            hist.append((x, pos))
            pos += x.nop
            if len(hist) > 40:
                hist = hist[-40:]
        txt = []
        for kind, x in out:
            if kind == 'i':
                txt.append('    ' + x.text)
            elif kind == 'l':
                txt.append(x + ':')
            else:
                txt.append(x)
        return '\n'.join(txt) + '\n'
```

```python
from gen import *

QF = 32
SR = 64
PR = 96
FP = 112
OR = 144
TP = 208


def m_phase(a, do_qk, do_pv):
    a.lg = []
    seq = []
    if do_qk:
        for kt in range(2):
            for ds in range(8):
                seq.append(('k', kt, ds))
    if do_pv:
        for ks in range(4):
            for dt in range(4):
                seq.append(('v', dt, ks))
    D = 6

    def issue(n):
        kind, x, y = seq[n]
        r = FP + (n % 8) * 4
        if kind == 'k':
            a(f'ds_read_b128 v[{r}:{r+3}], v{8+y} offset:{x*8192}', tag=('f', n))
        else:
            for j in range(2):
                a(f'ds_read_b64_tr_b16 v[{r+2*j}:{r+2*j+1}], v{16+x} offset:{(16*y + 8*j)*256}', tag=('f', n))

    for n in range(min(D, len(seq))):
        issue(n)
    for n in range(len(seq)):
        kind, x, y = seq[n]
        r = FP + (n % 8) * 4
        a.wait_lg(('f', n))
        if kind == 'k':
            acc = SR + x * 16
            c = '0' if y == 0 else f'v[{acc}:{acc+15}]'
            a(f'v_mfma_f32_32x32x16_bf16 v[{acc}:{acc+15}], v[{r}:{r+3}], v[{QF+y*4}:{QF+y*4+3}], {c}')
        else:
            acc = OR + x * 16
            a(f'v_mfma_f32_32x32x16_bf16 v[{acc}:{acc+15}], v[{r}:{r+3}], v[{PR+y*4}:{PR+y*4+3}], v[{acc}:{acc+15}]')
        if n + D < len(seq):
            issue(n + D)


def dma_k(a):
    a('s_mov_b32 m0, s80')
    a('s_add_u32 s72, s71, 32768')
    for t in range(4):
        a(f'buffer_load_dwordx4 v{2+t}, s[48:51], s72 offen offset:{t*1024} lds')
    a('s_xor_b32 s80, s80, 16384')


def dma_v(a):
    a('s_mov_b32 m0, s81')
    a('s_nop 0')
    for t in range(4):
        a(f'buffer_load_dwordx4 v6, s[52:55], s71 offen offset:{t*1024} lds')
    a('s_xor_b32 s81, s81, 16384')


def v_phase(a):
    a('s_cmp_eq_u32 s70, s69')
    a('s_cbranch_scc0 K3_NOMASK')
    a('s_nop 15')
    for kt in range(2):
        for r0 in range(0, 16, 4):
            for k in range(4):
                r = r0 + k
                cst = kt * 32 + 8 * (r // 4) + r % 4
                a(f'v_cmp_gt_i32 s[{84+2*k}:{85+2*k}], {cst}, v22')
            for k in range(4):
                r = r0 + k
                a(f'v_cndmask_b32 v{SR+kt*16+r}, v{SR+kt*16+r}, v29, s[{84+2*k}:{85+2*k}]')
    a.label('K3_NOMASK')
    a('s_nop 15')
    a(f'v_max3_f32 v23, v{SR}, v{SR+1}, v{SR+2}')
    a(f'v_max3_f32 v24, v{SR+3}, v{SR+4}, v{SR+5}')
    for i in range(6, 30, 4):
        a(f'v_max3_f32 v23, v23, v{SR+i}, v{SR+i+1}')
        a(f'v_max3_f32 v24, v24, v{SR+i+2}, v{SR+i+3}')
    a(f'v_max3_f32 v23, v23, v{SR+30}, v{SR+31}')
    a('v_max_f32 v23, v23, v24')
    a('v_mov_b32 v24, v23')
    a('v_permlane32_swap_b32 v23, v24')
    a('v_max3_f32 v24, v23, v24, v20')
    a('v_sub_f32 v25, v20, v24')
    a('v_mul_f32 v25, s83, v25')
    a('v_exp_f32 v25, v25')
    a('v_mul_f32 v26, s83, v24')
    a('v_mov_b32 v20, v24')
    for i in range(32):
        a(f'v_fma_f32 v{SR+i}, v{SR+i}, s83, -v26')
    for i in range(32):
        a(f'v_exp_f32 v{SR+i}, v{SR+i}')
    a('v_mul_f32 v21, v21, v25')
    a(f'v_add_f32 v23, v{SR}, v{SR+1}')
    a(f'v_add_f32 v24, v{SR+2}, v{SR+3}')
    for i in range(4, 32, 2):
        a(f'v_add_f32 v23, v23, v{SR+i}')
        a(f'v_add_f32 v24, v24, v{SR+i+1}')
    for i in range(16):
        a(f'v_cvt_pk_bf16_f32 v{PR+i}, v{SR+2*i}, v{SR+2*i+1}')
    a('v_add_f32 v21, v21, v23')
    a('v_add_f32 v21, v21, v24')
    for i in range(64):
        a(f'v_mul_f32 v{OR+i}, v{OR+i}, v25')
    for i in range(8):
        a(f'v_xor_b32 v{8+i}, 0x4000, v{8+i}')


def merge_out(a, grp):
    own = OR + grp * 32
    oth = OR + (1 - grp) * 32
    for i in range(8):
        a(f'ds_write_b128 v30, v[{oth+4*i}:{oth+4*i+3}] offset:{i*1024}')
    a('ds_write_b64 v31, v[20:21]')
    a('s_waitcnt lgkmcnt(0)')
    a('s_barrier')
    a('v_xor_b32 v23, 0x8000, v30')
    a('v_xor_b32 v24, 0x800, v31')
    for i in range(8):
        a(f'ds_read_b128 v[{TP+4*i}:{TP+4*i+3}], v23 offset:{i*1024}')
    a('ds_read_b64 v[240:241], v24')
    a('s_waitcnt lgkmcnt(0)')
    a('s_barrier')
    a('v_max_f32 v23, v20, v240')
    a('v_sub_f32 v24, v20, v23')
    a('v_sub_f32 v25, v240, v23')
    a('v_mul_f32 v24, s83, v24')
    a('v_mul_f32 v25, s83, v25')
    a('v_exp_f32 v24, v24')
    a('v_exp_f32 v25, v25')
    a('v_mul_f32 v21, v21, v24')
    a('v_fmac_f32 v21, v241, v25')
    a('v_mov_b32 v26, v21')
    a('v_mov_b32 v23, v21')
    a('v_permlane32_swap_b32 v26, v23')
    a('v_add_f32 v21, v26, v23')
    a('v_rcp_f32 v21, v21')
    a('v_mul_f32 v24, v24, v21')
    a('v_mul_f32 v25, v25, v21')
    for i in range(32):
        a(f'v_mul_f32 v{own+i}, v{own+i}, v24')
        a(f'v_fmac_f32 v{own+i}, v{TP+i}, v25')
    for dtl in range(2):
        acc = own + dtl * 16
        t = FP + dtl * 8
        for g in range(4):
            a(f'v_cvt_pk_bf16_f32 v{t+2*g}, v{acc+4*g}, v{acc+4*g+1}')
            a(f'v_cvt_pk_bf16_f32 v{t+2*g+1}, v{acc+4*g+2}, v{acc+4*g+3}')
        for k in (0, 2):
            b = t + 2 * k
            a(f'v_permlane32_swap_b32 v{b}, v{b+2}')
            a(f'v_permlane32_swap_b32 v{b+1}, v{b+3}')
            a(f'buffer_store_dwordx4 v[{b}:{b+3}], v7, s[56:59], s73 offen offset:{dtl*64 + k*16}')


def k3_attn(a):
    name = 'k3_attn_kernel'
    kernel_header(a, name)
    a.reset_counters()
    a('s_cmp_ge_u32 s2, 256')
    a('s_cbranch_scc1 K3_END')
    load_kernargs(a)
    a('v_and_b32 v1, 63, v0')
    a('v_lshrrev_b32 v23, 6, v0')
    a('v_readfirstlane_b32 s64, v23')
    a('s_lshr_b32 s65, s64, 2')
    a('s_and_b32 s66, s64, 3')
    a('s_and_b32 s3, s2, 7')
    a('s_lshr_b32 s4, s2, 3')
    a('s_and_b32 s5, s4, 3')
    a('s_lshl_b32 s67, s3, 2')
    a('s_add_u32 s67, s67, s5')
    a('s_lshr_b32 s68, s4, 2')
    a('s_mov_b32 s83, 0x3e0293ee')
    a('s_waitcnt lgkmcnt(0)')
    srd(a, 44, P_WS, 16 * MB, WS_Q)
    srd(a, 48, P_WS, 16 * MB, WS_K)
    srd(a, 52, P_WS, 16 * MB, WS_V)
    srd(a, 56, P_WS, CH_BYTES, WS_CH)
    a('v_lshrrev_b32 v23, 4, v1')
    a('v_and_b32 v24, 15, v1')
    a('s_lshl_b32 s72, s66, 12')
    a('v_lshlrev_b32 v25, 8, v23')
    a('v_add_u32 v25, s72, v25')
    for t in range(4):
        a(f'v_add_u32 v26, {4*t}, v23')
        a('v_xor_b32 v26, v24, v26')
        a(f'v_lshl_add_u32 v{2+t}, v26, 4, v25')
    a('v_lshrrev_b32 v26, 2, v24')
    a('v_xor_b32 v26, v26, v23')
    a('v_lshl_add_u32 v6, v26, 6, v25')
    a('v_and_b32 v26, 3, v1')
    a('v_lshl_add_u32 v6, v26, 4, v6')
    a('s_lshl_b32 s72, s65, 16')
    a('v_and_b32 v23, 31, v1')
    a('v_lshlrev_b32 v23, 8, v23')
    a('v_add_u32 v23, s72, v23')
    a('v_lshrrev_b32 v24, 5, v1')
    a('v_and_b32 v25, 15, v1')
    a('v_xor_b32 v25, v24, v25')
    a('v_lshl_add_u32 v27, v25, 4, v23')
    a('v_bfe_u32 v25, v1, 2, 2')
    a('v_lshl_add_u32 v23, v24, 2, v25')
    a('v_lshlrev_b32 v23, 8, v23')
    a('s_add_u32 s72, s72, 32768')
    a('v_add_u32 v23, s72, v23')
    a('v_lshl_add_u32 v23, v25, 6, v23')
    a('v_bfe_u32 v25, v1, 4, 1')
    a('v_lshl_add_u32 v23, v25, 5, v23')
    a('v_and_b32 v25, 3, v1')
    a('v_lshl_add_u32 v28, v25, 3, v23')
    a('v_and_b32 v22, 31, v1')
    a('s_lshl_b32 s72, s66, 5')
    a('s_lshl_b32 s73, s65, 6')
    a('s_sub_i32 s72, s72, s73')
    a('v_add_u32 v22, s72, v22')
    a('v_lshlrev_b32 v23, 2, v24')
    a('v_sub_u32 v22, v22, v23')
    a('v_mov_b32 v29, 0xf149f2ca')
    a('s_lshl_b32 s72, s64, 13')
    a('v_lshlrev_b32 v30, 4, v1')
    a('v_add_u32 v30, s72, v30')
    a('s_lshl_b32 s72, s64, 9')
    a('s_add_u32 s72, s72, 131072')
    a('v_lshlrev_b32 v31, 3, v1')
    a('v_add_u32 v31, s72, v31')
    a('v_and_b32 v23, 31, v1')
    a(f's_mov_b32 s72, {LDCH}')
    a('v_mul_lo_u32 v7, v23, s72')
    a('v_lshl_add_u32 v7, v24, 4, v7')
    a('v_lshlrev_b32 v255, 8, v23')
    a('v_lshl_add_u32 v255, v24, 4, v255')
    a('s_sub_u32 s69, 15, s68')
    a('s_mov_b32 s82, 0')
    a.label('K3_PASS')
    a('s_lshl_b32 s72, s67, 19')
    a('s_lshl_b32 s73, s69, 15')
    a('s_add_u32 s72, s72, s73')
    a('s_lshl_b32 s73, s66, 13')
    a('s_add_u32 s72, s72, s73')
    for ds in range(8):
        a(f'buffer_load_dwordx4 v[{QF+4*ds}:{QF+4*ds+3}], v255, s[44:47], s72 offen offset:{ds*32}')
    a('s_lshl_b32 s71, s67, 19')
    a('s_lshl_b32 s72, s65, 14')
    a('s_add_u32 s71, s71, s72')
    a('s_sub_u32 s71, s71, 32768')
    a('s_lshl_b32 s80, s65, 16')
    a('s_lshl_b32 s72, s66, 12')
    a('s_add_u32 s80, s80, s72')
    a('s_add_u32 s81, s80, 32768')
    dma_k(a)
    a('s_add_u32 s71, s71, 32768')
    for ds in range(8):
        a(f'v_xor_b32 v{8+ds}, {ds*32}, v27')
    for dt in range(4):
        a(f'v_xor_b32 v{16+dt}, {dt*64}, v28')
    a('v_mov_b32 v20, v29')
    a('v_mov_b32 v21, 0')
    for i in range(64):
        a(f'v_mov_b32 v{OR+i}, 0')
    a('s_mov_b32 s70, 0')
    a('s_cmp_eq_u32 s65, 1')
    a('s_cbranch_scc0 K3_NOSTAG')
    a('s_barrier')
    a.label('K3_NOSTAG')
    a('s_waitcnt vmcnt(0)')
    a('s_barrier')
    a('s_cmp_eq_u32 s69, 0')
    a('s_cbranch_scc1 K3_M0_NOK')
    dma_k(a)
    a.label('K3_M0_NOK')
    dma_v(a)
    a('s_add_u32 s71, s71, 32768')
    m_phase(a, True, False)
    a('s_barrier')
    a.label('K3_LOOP')
    v_phase(a)
    a('s_waitcnt vmcnt(0)')
    a('s_barrier')
    a('s_cmp_eq_u32 s70, s69')
    a('s_cbranch_scc1 K3_FINAL')
    a('s_add_u32 s70, s70, 1')
    a('s_cmp_eq_u32 s70, s69')
    a('s_cbranch_scc1 K3_M_NOK')
    dma_k(a)
    a.label('K3_M_NOK')
    dma_v(a)
    a('s_add_u32 s71, s71, 32768')
    m_phase(a, True, True)
    for dt in range(4):
        a(f'v_xor_b32 v{16+dt}, 0x4000, v{16+dt}')
    a('s_barrier')
    a('s_branch K3_LOOP')
    a.label('K3_FINAL')
    m_phase(a, False, True)
    a('s_barrier')
    a('s_cmp_eq_u32 s65, 0')
    a('s_cbranch_scc0 K3_NOSTAG2')
    a('s_barrier')
    a.label('K3_NOSTAG2')
    a('s_nop 15')
    a('s_lshl_b32 s72, s69, 7')
    a('s_lshl_b32 s73, s66, 5')
    a('s_add_u32 s72, s72, s73')
    a(f's_mul_i32 s73, s72, {LDCH}')
    a('s_lshl_b32 s72, s67, 8')
    a('s_add_u32 s73, s73, s72')
    a('s_lshl_b32 s72, s65, 7')
    a('s_add_u32 s73, s73, s72')
    a('s_cmp_eq_u32 s65, 1')
    a('s_cbranch_scc1 K3_MERGE1')
    merge_out(a, 0)
    a('s_branch K3_MERGED')
    a.label('K3_MERGE1')
    merge_out(a, 1)
    a.label('K3_MERGED')
    a('s_nop 7')
    a('s_cmp_eq_u32 s82, 1')
    a('s_cbranch_scc1 K3_END')
    a('s_mov_b32 s82, 1')
    a('s_mov_b32 s69, s68')
    a('s_branch K3_PASS')
    a.label('K3_END')
    a('s_endpgm')
    return name, kernel_desc(name, 256)
```

```python
import sys, os
sys.path.insert(0, os.path.dirname(__file__))
from asmlib import Asm

NAME = 'parallel_sum__compressed_kv_cla__dense_activation_squared_relu__prompt'

MB = 1 << 20
WS_XN = 0
WS_Q = 16 * MB
WS_K = 32 * MB
WS_V = 48 * MB
WS_CH = 64 * MB
WS_PART = 96 * MB
LDCH = 5888 * 2
CH_BYTES = 2048 * LDCH
NSPLIT = 8

P_X, P_CKV, P_WQ, P_WUK, P_WUV, P_WO, P_BX, P_W1 = 16, 18, 20, 22, 24, 26, 28, 30
P_B1, P_W2, P_B2, P_OUT, P_DBG, P_WS = 32, 34, 36, 38, 40, 42


def load_kernargs(a):
    a('s_load_dwordx16 s[16:31], s[0:1], 0')
    a('s_load_dwordx8 s[32:39], s[0:1], 64')
    a('s_load_dwordx4 s[40:43], s[0:1], 96')


def srd(a, d, ptr, nbytes, off=0):
    if off:
        a(f's_add_u32 s{d}, s{ptr}, 0x{off:x}')
        a(f's_addc_u32 s{d+1}, s{ptr+1}, 0')
        a(f's_and_b32 s{d+1}, s{d+1}, 0xffff')
    else:
        a(f's_mov_b32 s{d}, s{ptr}')
        a(f's_and_b32 s{d+1}, s{ptr+1}, 0xffff')
    a(f's_mov_b32 s{d+2}, 0x{nbytes:x}')
    a(f's_mov_b32 s{d+3}, 0x20000')


def csel(a, dst, x, y):
    a(f's_mov_b32 s101, {y}')
    a(f's_cselect_b32 {dst}, {x}, s101')


def kernel_header(a, name):
    a.raw(f'.text\n.globl {name}\n.p2align 8\n.type {name},@function\n{name}:')


def kernel_desc(name, vgpr, sgpr=102):
    acc = (vgpr + 3) // 4 * 4
    return f'''.section .rodata,"a"
.p2align 6
.amdhsa_kernel {name}
  .amdhsa_next_free_vgpr {vgpr}
  .amdhsa_next_free_sgpr {sgpr}
  .amdhsa_accum_offset {acc}
  .amdhsa_group_segment_fixed_size 0
  .amdhsa_kernarg_size 112
  .amdhsa_user_sgpr_count 2
  .amdhsa_user_sgpr_kernarg_segment_ptr 1
  .amdhsa_system_sgpr_workgroup_id_x 1
.end_amdhsa_kernel
'''


def gemm_setup(a, TN, lda):
    WN = TN // 64
    WM = 8 // WN
    JM = (256 // WM) // 32
    SS = 16384 + TN * 64
    a('v_and_b32 v1, 63, v0')
    a('v_lshrrev_b32 v14, 6, v0')
    a('v_readfirstlane_b32 s64, v14')
    a(f's_and_b32 s69, s64, {WN-1}')
    a(f's_lshr_b32 s70, s64, {WN.bit_length()-1}')
    a('v_lshrrev_b32 v14, 2, v1')
    a('v_lshlrev_b32 v15, 5, v0')
    a('s_lshl_b32 s72, s64, 5')
    a('v_add_u32 v14, s72, v14')
    a(f's_mov_b32 s73, {lda}')
    a('v_mul_lo_u32 v14, v14, s73')
    a('v_lshrrev_b32 v15, 4, v1')
    a('v_and_b32 v16, 3, v1')
    a('v_xor_b32 v15, v15, v16')
    a('v_lshl_add_u32 v2, v15, 4, v14')
    a(f'v_add_u32 v3, {16*lda}, v2')
    if TN == 256:
        a('v_lshrrev_b32 v14, 5, v1')
        a('s_lshl_b32 s72, s64, 2')
        a('v_add_u32 v15, s72, v14')
        a('v_mul_lo_u32 v15, v15, s67')
        a('v_bfe_u32 v16, v1, 2, 3')
        a('v_and_b32 v17, 3, v1')
        a('v_xor_b32 v18, v16, v14')
        a('v_lshlrev_b32 v18, 6, v18')
        a('v_lshl_add_u32 v18, v17, 4, v18')
        a('v_add_u32 v4, v15, v18')
        a('v_xor_b32 v18, 2, v14')
        a('v_xor_b32 v18, v16, v18')
        a('v_lshlrev_b32 v18, 6, v18')
        a('v_lshl_add_u32 v18, v17, 4, v18')
        a('v_add_u32 v5, v15, v18')
        a('s_lshl_b32 s72, s67, 1')
        a('v_add_u32 v5, s72, v5')
    else:
        a('v_lshrrev_b32 v14, 4, v1')
        a('s_lshl_b32 s72, s64, 2')
        a('v_add_u32 v15, s72, v14')
        a('v_mul_lo_u32 v15, v15, s67')
        a('v_bfe_u32 v16, v1, 2, 2')
        a('v_and_b32 v17, 3, v1')
        a('v_xor_b32 v18, v16, v14')
        a('v_lshlrev_b32 v18, 6, v18')
        a('v_lshl_add_u32 v18, v17, 4, v18')
        a('v_add_u32 v4, v15, v18')
        a('v_mov_b32 v5, v4')
    a('v_and_b32 v14, 31, v1')
    a(f's_mul_i32 s72, s70, {(256//WM)*64}')
    a('v_lshlrev_b32 v14, 6, v14')
    a('v_add_u32 v14, s72, v14')
    a('v_lshrrev_b32 v15, 5, v1')
    a('v_bfe_u32 v16, v1, 2, 2')
    a('v_xor_b32 v15, v15, v16')
    a('v_lshl_add_u32 v6, v15, 4, v14')
    a('v_xor_b32 v7, 32, v6')
    a(f'v_add_u32 v8, {2*SS}, v6')
    a(f'v_add_u32 v9, {2*SS}, v7')
    RS = TN * 2
    a('v_lshrrev_b32 v14, 5, v1')
    a('v_lshlrev_b32 v14, 3, v14')
    a('v_bfe_u32 v15, v1, 2, 2')
    a('v_add_u32 v14, v14, v15')
    a(f'v_mul_u32_u24 v14, {RS}, v14')
    a('s_lshl_b32 s72, s69, 1')
    a('v_xor_b32 v15, s72, v15')
    a('v_lshl_add_u32 v14, v15, 6, v14')
    a('v_bfe_u32 v15, v1, 4, 1')
    a('v_lshl_add_u32 v14, v15, 5, v14')
    a('v_and_b32 v15, 3, v1')
    a('v_lshl_add_u32 v14, v15, 3, v14')
    a('v_add_u32 v10, 16384, v14')
    a('v_xor_b32 v11, 64, v10')
    a(f'v_add_u32 v12, {2*SS}, v10')
    a(f'v_add_u32 v13, {2*SS}, v11')
    a('s_lshl_b32 s71, s64, 11')
    if TN == 256:
        a('s_mov_b32 s74, s71')
    else:
        a('s_lshl_b32 s74, s64, 10')


def gemm_main(a, TN, nst, w_stage_hook=None, pre_loop_hook=None):
    WN = TN // 64
    WM = 8 // WN
    JM = (256 // WM) // 32
    SS = 16384 + TN * 64
    RS = TN * 2

    def dma(s):
        buf = s % 4
        base = buf * SS
        for t in range(2):
            a(f's_add_u32 m0, s71, {base + t*1024}')
            a(f'buffer_load_dwordx4 v{2+t}, s[44:47], s65 offen lds', tag=('st', s))
        a('s_add_u32 s65, s65, 64')
        if w_stage_hook:
            w_stage_hook(s)
        for t in range(2 if TN == 256 else 1):
            a(f's_add_u32 m0, s74, {base + 16384 + t*1024}')
            a(f'buffer_load_dwordx4 v{4+t}, s[48:51], s66 offen lds', tag=('st', s))
        a('s_add_u32 s66, s66, s68')

    def reads(s, ks, b):
        buf = s % 4
        win = buf // 2
        so = (buf % 2) * SS
        for i in range(2):
            for j in range(2):
                r = 32 + b * 8 + i * 4 + j * 2
                a(f'ds_read_b64_tr_b16 v[{r}:{r+1}], v{10 + win*2 + i} offset:{so + (16*ks + 4*j)*RS}', tag=('fr', s, ks))
        for jm in range(JM):
            r = 48 + b * 16 + jm * 4
            a(f'ds_read_b128 v[{r}:{r+3}], v{6 + win*2 + ks} offset:{so + jm*2048}', tag=('fr', s, ks))

    def mfmas(b, first):
        for i in range(2):
            for jm in range(JM):
                acc = 128 + (i * JM + jm) * 16
                c = '0' if first else f'v[{acc}:{acc+15}]'
                a(f'v_mfma_f32_32x32x16_bf16 v[{acc}:{acc+15}], v[{32+b*8+i*4}:{32+b*8+i*4+3}], v[{48+b*16+jm*4}:{48+b*16+jm*4+3}], {c}')

    for s in range(min(3, nst)):
        dma(s)
    if pre_loop_hook:
        pre_loop_hook()
    a.wait_vm(('st', 0))
    a('s_barrier')
    reads(0, 0, 0)
    for s in range(nst):
        reads(s, 1, 1)
        a.wait_lg(('fr', s, 0))
        mfmas(0, s == 0)
        if s + 1 < nst:
            a.wait_vm(('st', s + 1))
            a('s_barrier')
            if s + 3 < nst:
                dma(s + 3)
            reads(s + 1, 0, 0)
        a.wait_lg(('fr', s, 1))
        mfmas(1, False)


def epi_bf16_store(a, JM, sbase, rowstep, vofs, src_of):
    pass


def epilogue_qkv(a, JM=4):
    a('v_and_b32 v14, 31, v1')
    a('v_lshlrev_b32 v14, 8, v14')
    a('v_lshrrev_b32 v15, 5, v1')
    a('v_lshl_add_u32 v14, v15, 4, v14')
    n = 0
    for jm in range(JM):
        a(f's_add_u32 s76, s75, {jm*32*256}')
        for i in range(2):
            acc = 128 + (i * JM + jm) * 16
            t = 80 + (n % 4) * 8
            n += 1
            for g in range(4):
                a(f'v_cvt_pk_bf16_f32 v{t+2*g}, v{acc+4*g}, v{acc+4*g+1}')
                a(f'v_cvt_pk_bf16_f32 v{t+2*g+1}, v{acc+4*g+2}, v{acc+4*g+3}')
            for k in (0, 2):
                b = t + 2 * k
                a(f'v_permlane32_swap_b32 v{b}, v{b+2}')
                a(f'v_permlane32_swap_b32 v{b+1}, v{b+3}')
                a(f'buffer_store_dwordx4 v[{b}:{b+3}], v14, s[52:55], s76 offen offset:{i*64 + k*16}')


def epilogue_ffn(a, JM=4):
    a('v_lshrrev_b32 v15, 5, v1')
    a('v_lshlrev_b32 v16, 3, v15')
    for i in range(2):
        for g in range(4):
            r = 16 + 0
    for i in range(2):
        for g in range(4):
            r = 96 + (i * 4 + g) * 2
            a(f'buffer_load_dwordx2 v[{r}:{r+1}], v16, s[56:59], s77 offen offset:{i*64 + g*16}', tag='bias')
    a('v_and_b32 v14, 31, v1')
    a(f's_mov_b32 s76, {LDCH}')
    a('v_mul_lo_u32 v14, v14, s76')
    a('v_lshl_add_u32 v14, v15, 4, v14')
    a.wait_vm('bias')
    for i in range(2):
        for g in range(4):
            r = 96 + (i * 4 + g) * 2
            o = 32 + (i * 4 + g) * 4
            a(f'v_lshlrev_b32 v{o}, 16, v{r}')
            a(f'v_and_b32 v{o+1}, 0xffff0000, v{r}')
            a(f'v_lshlrev_b32 v{o+2}, 16, v{r+1}')
            a(f'v_and_b32 v{o+3}, 0xffff0000, v{r+1}')
    n = 0
    for jm in range(JM):
        a(f's_add_u32 s76, s75, {jm*32*LDCH}')
        for i in range(2):
            acc = 128 + (i * JM + jm) * 16
            t = 80 + (n % 2) * 8
            n += 1
            for g in range(4):
                for h in range(2):
                    r0 = acc + 4 * g + 2 * h
                    bo = 32 + (i * 4 + g) * 4 + 2 * h
                    d = t + 2 * g + h
                    a(f'v_cvt_pk_bf16_f32 v112, v{r0}, v{r0+1}')
                    a(f'v_lshlrev_b32 v113, 16, v112')
                    a(f'v_and_b32 v114, 0xffff0000, v112')
                    a(f'v_add_f32 v113, v113, v{bo}')
                    a(f'v_add_f32 v114, v114, v{bo+1}')
                    a(f'v_cvt_pk_bf16_f32 v112, v113, v114')
                    a(f'v_lshlrev_b32 v113, 16, v112')
                    a(f'v_and_b32 v114, 0xffff0000, v112')
                    a(f'v_max_f32 v113, 0, v113')
                    a(f'v_max_f32 v114, 0, v114')
                    a(f'v_mul_f32 v113, v113, v113')
                    a(f'v_mul_f32 v114, v114, v114')
                    a(f'v_cvt_pk_bf16_f32 v{d}, v113, v114')
            for k in (0, 2):
                b = t + 2 * k
                a(f'v_permlane32_swap_b32 v{b}, v{b+2}')
                a(f'v_permlane32_swap_b32 v{b+1}, v{b+3}')
                a(f'buffer_store_dwordx4 v[{b}:{b+3}], v14, s[52:55], s76 offen offset:{i*64 + k*16}')


def epilogue_part(a, JM=2):
    a('v_and_b32 v14, 31, v1')
    a('v_lshlrev_b32 v14, 11, v14')
    a('v_lshrrev_b32 v15, 5, v1')
    a('v_lshl_add_u32 v14, v15, 4, v14')
    for jm in range(JM):
        a(f's_add_u32 s76, s75, {jm*32*2048}')
        for i in range(2):
            acc = 128 + (i * JM + jm) * 16
            for g in range(4):
                a(f'buffer_store_dwordx4 v[{acc+4*g}:{acc+4*g+3}], v14, s[52:55], s76 offen offset:{i*128 + g*32}')


def wave_allreduce_add(a, v, t):
    for off in (0x041F, 0x081F, 0x101F, 0x201F, 0x401F):
        a(f'ds_swizzle_b32 v{t}, v{v} offset:0x{off:04X}')
        a('s_waitcnt lgkmcnt(0)')
        a(f'v_add_f32 v{v}, v{v}, v{t}')
    a(f'v_mov_b32 v{t}, v{v}')
    a(f'v_mov_b32 v{t+1}, v{v}')
    a(f'v_permlane32_swap_b32 v{t}, v{t+1}')
    a(f'v_add_f32 v{v}, v{t}, v{t+1}')


def bf16_round(a, v, t):
    a(f'v_cvt_pk_bf16_f32 v{t}, v{v}, v{v}')
    a(f'v_lshlrev_b32 v{v}, 16, v{t}')


def layernorm_row(a):
    for i in range(4):
        a(f'v_lshlrev_b32 v{84+2*i}, 16, v{80+i}')
        a(f'v_and_b32 v{85+2*i}, 0xffff0000, v{80+i}')
    a('v_add_f32 v92, v84, v85')
    for i in range(2, 8):
        a(f'v_add_f32 v92, v92, v{84+i}')
    wave_allreduce_add(a, 92, 93)
    a('v_mul_f32 v92, 0x3b000000, v92')
    a('v_mov_b32 v95, 0')
    for i in range(8):
        a(f'v_sub_f32 v93, v{84+i}, v92')
        a('v_fmac_f32 v95, v93, v93')
    wave_allreduce_add(a, 95, 93)
    a('v_mul_f32 v95, 0x3b000000, v95')
    bf16_round(a, 92, 93)
    bf16_round(a, 95, 93)
    a('v_add_f32 v95, 0x3727c5ac, v95')
    bf16_round(a, 95, 93)
    a('v_sqrt_f32 v95, v95')
    bf16_round(a, 95, 93)
    a('v_rcp_f32 v95, v95')
    for i in range(8):
        a(f'v_sub_f32 v{84+i}, v{84+i}, v92')
    for i in range(4):
        a(f'v_cvt_pk_bf16_f32 v{80+i}, v{84+2*i}, v{85+2*i}')
    for i in range(4):
        a(f'v_lshlrev_b32 v{84+2*i}, 16, v{80+i}')
        a(f'v_and_b32 v{85+2*i}, 0xffff0000, v{80+i}')
    for i in range(8):
        a(f'v_mul_f32 v{84+i}, v{84+i}, v95')
    for i in range(4):
        a(f'v_cvt_pk_bf16_f32 v{80+i}, v{84+2*i}, v{85+2*i}')
    a('buffer_store_dwordx4 v[80:83], v19, s[60:63], 0 offen', tag='lnst')


def k1_kv(a):
    name = 'k1_kv_kernel'
    kernel_header(a, name)
    a.reset_counters()
    a('s_cmp_ge_u32 s2, 256')
    a('s_cbranch_scc1 K1_END')
    load_kernargs(a)
    a('s_and_b32 s3, s2, 7')
    a('s_lshr_b32 s4, s2, 3')
    a('s_and_b32 s5, s4, 3')
    a('s_lshl_b32 s3, s3, 2')
    a('s_add_u32 s3, s3, s5')
    a('s_lshr_b32 s4, s4, 2')
    a('s_waitcnt lgkmcnt(0)')
    srd(a, 44, P_CKV, 2048 * 1024)
    a('s_cmp_lt_u32 s3, 16')
    a(f's_cselect_b32 s48, s{P_WUK}, s{P_WUV}')
    a(f's_cselect_b32 s49, s{P_WUK+1}, s{P_WUV+1}')
    csel(a, 's5', f'0x{WS_K:x}', f'0x{WS_V:x}')
    a('s_and_b32 s49, s49, 0xffff')
    a(f's_mov_b32 s50, 0x{512*8192:x}')
    a('s_mov_b32 s51, 0x20000')
    a(f's_add_u32 s52, s{P_WS}, s5')
    a(f's_addc_u32 s53, s{P_WS+1}, 0')
    a('s_and_b32 s53, s53, 0xffff')
    a(f's_mov_b32 s54, 0x{16*MB:x}')
    a('s_mov_b32 s55, 0x20000')
    srd(a, 56, P_X, 2048 * 1024)
    srd(a, 60, P_WS, 2048 * 1024, WS_XN)
    a('s_and_b32 s3, s3, 15')
    a('s_lshl_b32 s65, s4, 18')
    a('s_lshl_b32 s66, s3, 9')
    a('s_mov_b32 s67, 8192')
    a(f's_mov_b32 s68, {32*8192}')
    gemm_setup(a, 256, 1024)
    a('s_lshl_b32 s72, s2, 3')
    a('s_add_u32 s72, s72, s64')
    a('s_lshl_b32 s72, s72, 10')
    a('v_lshlrev_b32 v19, 4, v1')
    a('v_add_u32 v19, s72, v19')
    a('buffer_load_dwordx4 v[80:83], v19, s[56:59], 0 offen', tag='lnld')

    def ln_hook():
        a.wait_vm('lnld')
        layernorm_row(a)
        a.lg = []
    gemm_main(a, 256, 16, pre_loop_hook=ln_hook)
    a('s_lshl_b32 s72, s3, 8')
    a('s_lshl_b32 s73, s69, 6')
    a('s_add_u32 s72, s72, s73')
    a('s_lshr_b32 s73, s72, 7')
    a('s_lshl_b32 s75, s73, 19')
    a('s_and_b32 s73, s72, 127')
    a('s_lshl_b32 s73, s73, 1')
    a('s_add_u32 s75, s75, s73')
    a('s_lshl_b32 s73, s4, 16')
    a('s_add_u32 s75, s75, s73')
    a('s_lshl_b32 s73, s70, 15')
    a('s_add_u32 s75, s75, s73')
    epilogue_qkv(a)
    a.label('K1_END')
    a('s_endpgm')
    return name, kernel_desc(name, 256)


def k2_qh(a):
    name = 'k2_qh_kernel'
    kernel_header(a, name)
    a.reset_counters()
    a('s_cmp_ge_u32 s2, 184')
    a('s_cbranch_scc1 K2_END')
    load_kernargs(a)
    a('s_and_b32 s3, s2, 7')
    a('s_lshr_b32 s4, s2, 3')
    a('s_mul_i32 s3, s3, 23')
    a('s_add_u32 s3, s3, s4')
    a('s_and_b32 s4, s3, 7')
    a('s_lshr_b32 s3, s3, 3')
    a('s_waitcnt lgkmcnt(0)')
    srd(a, 44, P_WS, 2048 * 1024, WS_XN)
    a('s_cmp_lt_u32 s3, 16')
    a(f's_cselect_b32 s48, s{P_WQ}, s{P_W1}')
    a(f's_cselect_b32 s49, s{P_WQ+1}, s{P_W1+1}')
    csel(a, 's50', f'0x{512*8192:x}', f'0x{512*3584:x}')
    a('s_mov_b32 s51, 0x20000')
    csel(a, 's5', f'0x{WS_Q:x}', f'0x{WS_CH:x}')
    a('s_and_b32 s49, s49, 0xffff')
    a(f's_add_u32 s52, s{P_WS}, s5')
    a(f's_addc_u32 s53, s{P_WS+1}, 0')
    a('s_and_b32 s53, s53, 0xffff')
    a('s_cmp_lt_u32 s3, 16')
    csel(a, 's54', f'0x{16*MB:x}', f'0x{CH_BYTES:x}')
    a('s_mov_b32 s55, 0x20000')
    csel(a, 's67', f'8192', f'3584')
    csel(a, 's68', f'{32*8192}', f'{32*3584}')
    csel(a, 's6', f'0', f'1')
    srd(a, 56, P_B1, 1792 * 2)
    a('s_and_b32 s3, s3, 15')
    a('s_lshl_b32 s65, s4, 18')
    a('s_lshl_b32 s66, s3, 9')
    gemm_setup(a, 256, 1024)
    gemm_main(a, 256, 16)
    a('s_lshl_b32 s72, s3, 8')
    a('s_lshl_b32 s73, s69, 6')
    a('s_add_u32 s72, s72, s73')
    a('s_cmp_eq_u32 s6, 1')
    a('s_cbranch_scc1 K2_FFN')
    a('s_lshr_b32 s73, s72, 7')
    a('s_lshl_b32 s75, s73, 19')
    a('s_and_b32 s73, s72, 127')
    a('s_lshl_b32 s73, s73, 1')
    a('s_add_u32 s75, s75, s73')
    a('s_lshl_b32 s73, s4, 16')
    a('s_add_u32 s75, s75, s73')
    a('s_lshl_b32 s73, s70, 15')
    a('s_add_u32 s75, s75, s73')
    epilogue_qkv(a)
    a('s_branch K2_END')
    a.label('K2_FFN')
    a('s_nop 15')
    a('s_lshl_b32 s77, s72, 1')
    a('s_lshl_b32 s73, s4, 8')
    a('s_lshl_b32 s75, s70, 7')
    a('s_add_u32 s73, s73, s75')
    a(f's_mul_i32 s75, s73, {LDCH}')
    a('s_add_u32 s75, s75, s77')
    a('s_add_u32 s75, s75, 8192')
    a.vm = []
    epilogue_ffn(a)
    a.label('K2_END')
    a('s_endpgm')
    return name, kernel_desc(name, 256)


def k4_out(a):
    name = 'k4_out_kernel'
    kernel_header(a, name)
    a.reset_counters()
    a('s_cmp_ge_u32 s2, 256')
    a('s_cbranch_scc1 K4_END')
    load_kernargs(a)
    a('s_and_b32 s3, s2, 7')
    a('s_lshr_b32 s4, s2, 3')
    a('s_and_b32 s5, s4, 3')
    a('s_lshr_b32 s4, s4, 2')
    a('s_waitcnt lgkmcnt(0)')
    srd(a, 44, P_WS, CH_BYTES, WS_CH)
    srd(a, 52, P_WS, NSPLIT * 4 * MB, WS_PART)
    a('s_and_b32 s27, s27, 0xffff')
    a('s_and_b32 s35, s35, 0xffff')
    a('s_mov_b32 s51, 0x20000')
    a('s_mul_i32 s6, s3, 736')
    a(f's_mul_i32 s65, s4, {256*LDCH}')
    a('s_lshl_b32 s72, s6, 1')
    a('s_add_u32 s65, s65, s72')
    a('s_lshl_b32 s7, s5, 8')
    a('s_mov_b32 s67, 1024')
    a('s_mov_b32 s68, 0')
    gemm_setup(a, 128, LDCH)

    def whook(s):
        a('s_cmp_lt_u32 s6, 4096')
        a(f's_cselect_b32 s48, s{P_WO}, s{P_W2}')
        a(f's_cselect_b32 s49, s{P_WO+1}, s{P_W2+1}')
        csel(a, 's50', f'0x{4096*1024:x}', f'0x{1792*1024:x}')
        csel(a, 's72', f'0', f'4096')
        a('s_sub_u32 s72, s6, s72')
        a('s_lshl_b32 s66, s72, 10')
        a('s_add_u32 s66, s66, s7')
        a('s_add_u32 s6, s6, 32')
    gemm_main(a, 128, 23, w_stage_hook=whook)
    a('s_lshl_b32 s75, s3, 22')
    a('s_lshl_b32 s72, s4, 19')
    a('s_add_u32 s75, s75, s72')
    a('s_lshl_b32 s72, s70, 17')
    a('s_add_u32 s75, s75, s72')
    a('s_lshl_b32 s72, s5, 9')
    a('s_add_u32 s75, s75, s72')
    a('s_lshl_b32 s72, s69, 8')
    a('s_add_u32 s75, s75, s72')
    epilogue_part(a)
    a.label('K4_END')
    a('s_endpgm')
    return name, kernel_desc(name, 192)


def k5_red(a):
    name = 'k5_red_kernel'
    kernel_header(a, name)
    a.reset_counters()
    a('s_cmp_ge_u32 s2, 512')
    a('s_cbranch_scc1 K5_END')
    load_kernargs(a)
    a('s_lshl_b32 s3, s2, 8')
    a('v_add_u32 v1, s3, v0')
    a('v_lshlrev_b32 v2, 4, v1')
    a('v_lshlrev_b32 v3, 5, v1')
    a('v_and_b32 v4, 63, v1')
    a('v_lshlrev_b32 v4, 4, v4')
    a('s_waitcnt lgkmcnt(0)')
    srd(a, 44, P_WS, NSPLIT * 4 * MB, WS_PART)
    srd(a, 48, P_X, 2 * MB)
    srd(a, 52, P_OUT, 2 * MB)
    srd(a, 56, P_B2, 1024)
    a('buffer_load_dwordx4 v[8:11], v2, s[48:51], 0 offen', tag='x')
    a('buffer_load_dwordx4 v[12:15], v4, s[56:59], 0 offen', tag='x')
    for s in range(NSPLIT):
        a(f's_mov_b32 s4, 0x{s*4*MB:x}')
        a(f'buffer_load_dwordx4 v[{16+s*8}:{19+s*8}], v3, s[44:47], s4 offen', tag=('p', s))
        a(f'buffer_load_dwordx4 v[{20+s*8}:{23+s*8}], v3, s[44:47], s4 offen offset:16', tag=('p', s))
    a.wait_vm('x')
    for i in range(4):
        a(f'v_lshlrev_b32 v{96+2*i}, 16, v{8+i}')
        a(f'v_and_b32 v{97+2*i}, 0xffff0000, v{8+i}')
        a(f'v_lshlrev_b32 v{104+2*i}, 16, v{12+i}')
        a(f'v_and_b32 v{105+2*i}, 0xffff0000, v{12+i}')
    for i in range(8):
        a(f'v_add_f32 v{96+i}, v{96+i}, v{104+i}')
    for s in range(NSPLIT):
        a.wait_vm(('p', s))
        for i in range(8):
            a(f'v_add_f32 v{96+i}, v{96+i}, v{16+s*8+i}')
    for i in range(4):
        a(f'v_cvt_pk_bf16_f32 v{8+i}, v{96+2*i}, v{97+2*i}')
    a('buffer_store_dwordx4 v[8:11], v2, s[52:55], 0 offen')
    a.label('K5_END')
    a('s_endpgm')
    return name, kernel_desc(name, 112)


def main():
    from attn import k3_attn
    a = Asm()
    descs = []
    launches = []
    n, d = k1_kv(a); descs.append(d); launches.append((n, 256, 512, 131072))
    n, d = k2_qh(a); descs.append(d); launches.append((n, 184, 512, 131072))
    n, d = k3_attn(a); descs.append(d); launches.append((n, 256, 512, 163840))
    n, d = k4_out(a); descs.append(d); launches.append((n, 256, 512, 98304))
    n, d = k5_red(a); descs.append(d); launches.append((n, 512, 256, 0))
    hdr = open(f'cdna_kernels/{NAME}.s.ref').read().split('; @launch')[0]
    out = hdr
    for (n, g, b, l) in launches:
        out += f'; @launch kernel={n} grid=({g},1,1) block=({b},1,1) lds={l}\n'
    out += '.amdgcn_target "amdgcn-amd-amdhsa--gfx950"\n'
    out += a.finalize()
    out += ''.join(descs)
    path = sys.argv[1] if len(sys.argv) > 1 else f'cdna_kernels/{NAME}.s'
    open(path, 'w').write(out)
    print('wrote', path, len(out), 'bytes')


if __name__ == '__main__':
    main()
```

```python
from gen import *

QF = 32
SR = 64
PR = 96
FP = 112
OR = 144
TP = 208
CB = 208


def cstamp(a):
    if not PROF:
        return
    lab = f'CS{len(a.lines)}'
    a('s_lshl_b32 s100, s82, 8')
    a('s_add_u32 s100, s100, s70')
    a('s_cmp_eq_u32 s100, 3')
    a(f's_cbranch_scc0 {lab}')
    stamp(a)
    a.label(lab)


def m_phase(a, do_qk, do_pv, fill=()):
    a.lg = []
    seq = []
    if do_qk:
        for kt in range(2):
            for ds in range(8):
                seq.append(('k', kt, ds))
    if do_pv:
        for ks in range(4):
            for dt in range(4):
                seq.append(('v', dt, ks))
    D = 6

    def issue(n):
        kind, x, y = seq[n]
        r = FP + (n % 8) * 4
        if kind == 'k':
            a(f'ds_read_b128 v[{r}:{r+3}], v{8+y} offset:{x*8192}', tag=('f', n))
        else:
            for j in range(2):
                a(f'ds_read_b64_tr_b16 v[{r+2*j}:{r+2*j+1}], v{16+x} offset:{(16*y + 8*j)*256}', tag=('f', n))

    for n in range(min(D, len(seq))):
        issue(n)
    for n in range(len(seq)):
        kind, x, y = seq[n]
        r = FP + (n % 8) * 4
        a.wait_lg(('f', n))
        if kind == 'k':
            acc = SR + x * 16
            c = f'v[{CB}:{CB+15}]' if y == 0 else f'v[{acc}:{acc+15}]'
            a(f'v_mfma_f32_32x32x16_bf16 v[{acc}:{acc+15}], v[{r}:{r+3}], v[{QF+y*4}:{QF+y*4+3}], {c}')
        else:
            acc = OR + x * 16
            a(f'v_mfma_f32_32x32x16_bf16 v[{acc}:{acc+15}], v[{r}:{r+3}], v[{PR+y*4}:{PR+y*4+3}], v[{acc}:{acc+15}]')
        if n + D < len(seq):
            issue(n + D)
        if n % 2 == 1 and n // 2 < len(fill):
            fill[n // 2]()


def dma_k(a):
    a('s_mov_b32 m0, s80')
    a('s_add_u32 s72, s71, 32768')
    for t in range(4):
        a(f'buffer_load_dwordx4 v{2+t}, s[48:51], s72 offen offset:{t*1024} lds')
    a('s_xor_b32 s80, s80, 16384')


def dma_v(a):
    a('s_mov_b32 m0, s81')
    a('s_nop 0')
    for t in range(4):
        a(f'buffer_load_dwordx4 v6, s[52:55], s71 offen offset:{t*1024} lds')
    a('s_xor_b32 s81, s81, 16384')


def dma_fill(a):
    L = []
    for t in range(4):
        def f(t=t):
            a('s_mov_b32 m0, s80')
            a(f'buffer_load_dwordx4 v{2+t}, s[48:51], s72 offen offset:{t*1024} lds')
        L.append(f)
    for t in range(4):
        def f(t=t):
            a('s_mov_b32 m0, s81')
            a(f'buffer_load_dwordx4 v6, s[52:55], s71 offen offset:{t*1024} lds')
            if t == 3:
                a('s_xor_b32 s80, s80, 16384')
                a('s_xor_b32 s81, s81, 16384')
                a('s_add_u32 s71, s71, 32768')
        L.append(f)
    return L


def dma_pre(a):
    a('s_add_u32 s72, s71, 32768')
    a('s_cmp_eq_u32 s70, s69')
    a('s_cselect_b32 s72, s74, s72')


def v_phase(a):
    a('s_setprio 0')
    a('s_cmp_eq_u32 s70, s69')
    a('s_cbranch_scc0 K3_NOMASK')
    a('s_nop 15')
    for kt in range(2):
        for r0 in range(0, 16, 4):
            for k in range(4):
                r = r0 + k
                cst = kt * 32 + 8 * (r // 4) + r % 4
                a(f'v_cmp_gt_i32 s[{8+2*k}:{9+2*k}], {cst}, v22')
            for k in range(4):
                r = r0 + k
                a(f'v_cndmask_b32 v{SR+kt*16+r}, v{SR+kt*16+r}, v29, s[{8+2*k}:{9+2*k}]')
    a.label('K3_NOMASK')
    a('s_nop 15')
    a(f'v_max3_f32 v23, v{SR}, v{SR+1}, v{SR+2}')
    a(f'v_max3_f32 v24, v{SR+3}, v{SR+4}, v{SR+5}')
    for i in range(6, 30, 4):
        a(f'v_max3_f32 v23, v23, v{SR+i}, v{SR+i+1}')
        a(f'v_max3_f32 v24, v24, v{SR+i+2}, v{SR+i+3}')
    a(f'v_max3_f32 v23, v23, v{SR+30}, v{SR+31}')
    a('v_max_f32 v23, v23, v24')
    a('v_mov_b32 v24, v23')
    a('v_permlane32_swap_b32 v23, v24')
    a('v_max_f32 v23, v23, v24')
    a('s_cmp_eq_u32 s70, 0')
    a('s_cbranch_scc1 K3_RARE')
    a('v_cmp_lt_f32 vcc, 0x41a00000, v23')
    a('s_cbranch_vccz K3_SKIP')
    a.label('K3_RARE')
    a('s_cmp_eq_u32 s70, 0')
    csel(a, 's72', '0xff7fffff', '0')
    a('v_max_f32 v24, s72, v23')
    a('v_cmp_lt_f32 vcc, 0xefa18f08, v23')
    a('v_cndmask_b32 v24, 0, v24, vcc')
    a('v_add_f32 v20, v20, v24')
    a('v_sub_f32 v25, 0, v24')
    a('v_exp_f32 v25, v25')
    a('v_sub_f32 v26, 0, v20')
    for i in range(32):
        a(f'v_sub_f32 v{SR+i}, v{SR+i}, v24')
    for i in range(16):
        a(f'v_mov_b32 v{CB+i}, v26')
    a('s_cmp_eq_u32 s70, 0')
    a('s_cbranch_scc1 K3_SKIP')
    a('v_mul_f32 v21, v21, v25')
    for i in range(64):
        a(f'v_mul_f32 v{OR+i}, v{OR+i}, v25')
    a.label('K3_SKIP')
    for i in range(32):
        a(f'v_exp_f32 v{SR+i}, v{SR+i}')
    a(f'v_add_f32 v23, v{SR}, v{SR+1}')
    a(f'v_add_f32 v24, v{SR+2}, v{SR+3}')
    for i in range(4, 32, 2):
        a(f'v_add_f32 v23, v23, v{SR+i}')
        a(f'v_add_f32 v24, v24, v{SR+i+1}')
    for i in range(16):
        a(f'v_cvt_pk_bf16_f32 v{PR+i}, v{SR+2*i}, v{SR+2*i+1}')
    a('v_add_f32 v21, v21, v23')
    a('v_add_f32 v21, v21, v24')
    for i in range(8):
        a(f'v_xor_b32 v{8+i}, 0x4000, v{8+i}')
    a('s_setprio 2')


def merge_out(a, grp):
    own = OR + grp * 32
    oth = OR + (1 - grp) * 32
    a('v_mov_b32 v26, v21')
    a('v_mov_b32 v23, v21')
    a('v_permlane32_swap_b32 v26, v23')
    a('v_add_f32 v21, v26, v23')
    for i in range(8):
        a(f'ds_write_b128 v30, v[{oth+4*i}:{oth+4*i+3}] offset:{i*1024}')
    a('ds_write_b64 v31, v[20:21]')
    a('s_waitcnt lgkmcnt(0)')
    a('s_barrier')
    a('v_xor_b32 v23, 0x10000, v30')
    a('v_xor_b32 v24, 0x800, v31')
    for i in range(8):
        a(f'ds_read_b128 v[{TP+4*i}:{TP+4*i+3}], v23 offset:{i*1024}')
    a('ds_read_b64 v[240:241], v24')
    a('s_waitcnt lgkmcnt(0)')
    a('s_barrier')
    a('v_mov_b32 v26, 0xff7fffff')
    a('v_cmp_lt_f32 vcc, 0, v21')
    a('v_cndmask_b32 v20, v26, v20, vcc')
    a('v_cmp_lt_f32 vcc, 0, v241')
    a('v_cndmask_b32 v240, v26, v240, vcc')
    a('v_max_f32 v23, v20, v240')
    a('v_sub_f32 v24, v20, v23')
    a('v_sub_f32 v25, v240, v23')
    a('v_exp_f32 v24, v24')
    a('v_exp_f32 v25, v25')
    a('v_mul_f32 v21, v21, v24')
    a('v_fmac_f32 v21, v241, v25')
    a('v_rcp_f32 v21, v21')
    a('v_mul_f32 v24, v24, v21')
    a('v_mul_f32 v25, v25, v21')
    for i in range(32):
        a(f'v_mul_f32 v{own+i}, v{own+i}, v24')
        a(f'v_fmac_f32 v{own+i}, v{TP+i}, v25')
    for dtl in range(2):
        acc = own + dtl * 16
        t = FP + dtl * 8
        for g in range(4):
            a(f'v_cvt_pk_bf16_f32 v{t+2*g}, v{acc+4*g}, v{acc+4*g+1}')
            a(f'v_cvt_pk_bf16_f32 v{t+2*g+1}, v{acc+4*g+2}, v{acc+4*g+3}')
        for k in (0, 2):
            b = t + 2 * k
            a(f'v_permlane32_swap_b32 v{b}, v{b+2}')
            a(f'v_permlane32_swap_b32 v{b+1}, v{b+3}')
            a(f'buffer_store_dwordx4 v[{b}:{b+3}], v7, s[56:59], s73 offen offset:{dtl*64 + k*16}')


def k3_attn(a):
    name = 'k3_attn_kernel'
    kernel_header(a, name)
    a.reset_counters()
    a('s_cmp_ge_u32 s2, 256')
    a('s_cbranch_scc1 K3_END')
    stamp(a)
    load_kernargs(a)
    a('v_and_b32 v1, 63, v0')
    a('v_lshrrev_b32 v23, 6, v0')
    a('v_readfirstlane_b32 s64, v23')
    a('s_lshr_b32 s65, s64, 2')
    a('s_and_b32 s66, s64, 3')
    a('s_and_b32 s3, s2, 7')
    a('s_lshr_b32 s4, s2, 3')
    a('s_and_b32 s5, s4, 3')
    a('s_lshl_b32 s67, s3, 2')
    a('s_add_u32 s67, s67, s5')
    a('s_lshr_b32 s68, s4, 2')
    a('s_mov_b32 s83, 0x3e0293ee')
    a('s_mov_b32 s84, 0x3e0293ee')
    a('s_mov_b32 s85, 0x3e0293ee')
    a('s_waitcnt lgkmcnt(0)')
    srd(a, 44, P_WS, 16 * MB, WS_Q)
    srd(a, 48, P_WS, 16 * MB, WS_K)
    srd(a, 52, P_WS, 16 * MB, WS_V)
    srd(a, 56, P_WS, CH_BYTES, WS_CH)
    a('v_lshrrev_b32 v23, 4, v1')
    a('v_and_b32 v24, 15, v1')
    a('s_lshl_b32 s72, s66, 12')
    a('v_lshlrev_b32 v25, 8, v23')
    a('v_add_u32 v25, s72, v25')
    for t in range(4):
        a(f'v_add_u32 v26, {4*t}, v23')
        a('v_xor_b32 v26, v24, v26')
        a(f'v_lshl_add_u32 v{2+t}, v26, 4, v25')
    a('v_lshrrev_b32 v26, 2, v24')
    a('v_xor_b32 v26, v26, v23')
    a('v_lshl_add_u32 v6, v26, 6, v25')
    a('v_and_b32 v26, 3, v1')
    a('v_lshl_add_u32 v6, v26, 4, v6')
    a('s_lshl_b32 s72, s65, 16')
    a('v_and_b32 v23, 31, v1')
    a('v_lshlrev_b32 v23, 8, v23')
    a('v_add_u32 v23, s72, v23')
    a('v_lshrrev_b32 v24, 5, v1')
    a('v_and_b32 v25, 15, v1')
    a('v_xor_b32 v25, v24, v25')
    a('v_lshl_add_u32 v27, v25, 4, v23')
    a('v_bfe_u32 v25, v1, 2, 2')
    a('v_lshl_add_u32 v23, v24, 2, v25')
    a('v_lshlrev_b32 v23, 8, v23')
    a('s_add_u32 s72, s72, 32768')
    a('v_add_u32 v23, s72, v23')
    a('v_lshl_add_u32 v23, v25, 6, v23')
    a('v_bfe_u32 v25, v1, 4, 1')
    a('v_lshl_add_u32 v23, v25, 5, v23')
    a('v_and_b32 v25, 3, v1')
    a('v_lshl_add_u32 v28, v25, 3, v23')
    a('v_and_b32 v22, 31, v1')
    a('s_lshl_b32 s72, s66, 5')
    a('s_lshl_b32 s73, s65, 6')
    a('s_sub_i32 s72, s72, s73')
    a('v_add_u32 v22, s72, v22')
    a('v_lshlrev_b32 v23, 2, v24')
    a('v_sub_u32 v22, v22, v23')
    a('v_mov_b32 v29, 0xf149f2ca')
    a('s_lshl_b32 s72, s65, 16')
    a('s_lshl_b32 s73, s66, 13')
    a('s_add_u32 s72, s72, s73')
    a('s_add_u32 s72, s72, 32768')
    a('v_lshlrev_b32 v30, 4, v1')
    a('v_add_u32 v30, s72, v30')
    a('s_lshl_b32 s72, s64, 9')
    a('s_add_u32 s72, s72, 131072')
    a('v_lshlrev_b32 v31, 3, v1')
    a('v_add_u32 v31, s72, v31')
    a('v_and_b32 v23, 31, v1')
    a(f's_mov_b32 s72, {LDCH}')
    a('v_mul_lo_u32 v7, v23, s72')
    a('v_lshl_add_u32 v7, v24, 4, v7')
    a('v_lshlrev_b32 v255, 8, v23')
    a('v_lshl_add_u32 v255, v24, 4, v255')
    a('s_sub_u32 s69, 15, s68')
    a('s_mov_b32 s82, 0')

    def qloads(qreg):
        a('s_lshl_b32 s72, s67, 19')
        a(f's_lshl_b32 s73, s{qreg}, 15')
        a('s_add_u32 s72, s72, s73')
        a('s_lshl_b32 s73, s66, 13')
        a('s_add_u32 s72, s72, s73')
        for ds in range(8):
            a(f'buffer_load_dwordx4 v[{QF+4*ds}:{QF+4*ds+3}], v255, s[44:47], s72 offen offset:{ds*32}')
    a('s_lshl_b32 s75, s67, 19')
    a('s_lshl_b32 s72, s65, 14')
    a('s_add_u32 s75, s75, s72')
    a('s_sub_u32 s71, s75, 32768')
    a('s_lshl_b32 s80, s65, 16')
    a('s_lshl_b32 s72, s66, 12')
    a('s_add_u32 s80, s80, s72')
    a('s_add_u32 s81, s80, 32768')
    dma_k(a)
    qloads(69)
    for ds in range(8):
        a(f'v_xor_b32 v{8+ds}, {ds*32}, v27')
    for dt in range(4):
        a(f'v_xor_b32 v{16+dt}, {dt*64}, v28')
    a('s_mov_b32 s74, s75')
    a.label('K3_PASS')
    a('s_mov_b32 s71, s75')
    a('v_mov_b32 v20, 0')
    a('v_mov_b32 v21, 0')
    for i in range(16):
        a(f'v_mov_b32 v{CB+i}, 0')
    for i in range(64):
        a(f'v_mov_b32 v{OR+i}, 0')
    a('s_mov_b32 s70, 0')
    a('s_cmp_eq_u32 s65, 1')
    a('s_cbranch_scc0 K3_NOSTAG')
    a('s_barrier')
    a.label('K3_NOSTAG')
    a('s_cmp_eq_u32 s82, 0')
    a('s_cbranch_scc1 K3_W0')
    a('s_waitcnt vmcnt(4)')
    a('s_branch K3_W1')
    a.label('K3_W0')
    a('s_waitcnt vmcnt(0)')
    a.label('K3_W1')
    a('s_barrier')
    if PROF:
        a('s_cmp_eq_u32 s82, 0')
        a('s_cbranch_scc0 K3_PS1')
        stamp(a)
        a.label('K3_PS1')
    dma_pre(a)
    m_phase(a, True, False, dma_fill(a))
    a('s_barrier')
    a.label('K3_LOOP')
    cstamp(a)
    v_phase(a)
    a('s_waitcnt vmcnt(0)')
    a('s_barrier')
    a('s_cmp_eq_u32 s70, s69')
    a('s_cbranch_scc1 K3_FINAL')
    a('s_add_u32 s70, s70, 1')
    dma_pre(a)
    m_phase(a, True, True, dma_fill(a))
    for dt in range(4):
        a(f'v_xor_b32 v{16+dt}, 0x4000, v{16+dt}')
    a('s_barrier')
    if PROF:
        a('s_sub_u32 s70, s70, 1')
        cstamp(a)
        a('s_add_u32 s70, s70, 1')
    a('s_branch K3_LOOP')
    a.label('K3_FINAL')
    a('s_cmp_eq_u32 s82, 0')
    a('s_cbranch_scc0 K3_NOQ')
    qloads(68)
    a.label('K3_NOQ')
    m_phase(a, False, True)
    for dt in range(4):
        a(f'v_xor_b32 v{16+dt}, 0x4000, v{16+dt}')
    a('s_barrier')
    a('s_cmp_eq_u32 s65, 0')
    a('s_cbranch_scc0 K3_NOSTAG2')
    a('s_barrier')
    a.label('K3_NOSTAG2')
    a('s_nop 15')
    a('s_lshl_b32 s72, s69, 7')
    a('s_lshl_b32 s73, s66, 5')
    a('s_add_u32 s72, s72, s73')
    a(f's_mul_i32 s73, s72, {LDCH}')
    a('s_lshl_b32 s72, s67, 8')
    a('s_add_u32 s73, s73, s72')
    a('s_lshl_b32 s72, s65, 7')
    a('s_add_u32 s73, s73, s72')
    a('s_cmp_eq_u32 s65, 1')
    a('s_cbranch_scc1 K3_MERGE1')
    merge_out(a, 0)
    a('s_branch K3_MERGED')
    a.label('K3_MERGE1')
    merge_out(a, 1)
    a.label('K3_MERGED')
    a('s_nop 7')
    a('s_cmp_eq_u32 s82, 1')
    a('s_cbranch_scc1 K3_PEND')
    stamp(a)
    a('s_mov_b32 s82, 1')
    a('s_mov_b32 s69, s68')
    a('s_mov_b32 s74, 0x7ff00000')
    a('s_branch K3_PASS')
    a.label('K3_PEND')
    stamp(a)
    stamp_dump(a, 64)
    a.label('K3_END')
    a('s_endpgm')
    return name, kernel_desc(name, 256)
```

```python
import sys, os
sys.path.insert(0, os.path.dirname(__file__))
from asmlib import Asm

NAME = 'parallel_sum__compressed_kv_cla__dense_activation_squared_relu__prompt'

MB = 1 << 20
WS_XN = 0
WS_Q = 16 * MB
WS_K = 32 * MB
WS_V = 48 * MB
WS_CH = 64 * MB
WS_PART = 96 * MB
LDCH = 5888 * 2
CH_BYTES = 2048 * LDCH
NSPLIT = 8

P_X, P_CKV, P_WQ, P_WUK, P_WUV, P_WO, P_BX, P_W1 = 16, 18, 20, 22, 24, 26, 28, 30
P_B1, P_W2, P_B2, P_OUT, P_DBG, P_WS = 32, 34, 36, 38, 40, 42


def load_kernargs(a):
    a('s_load_dwordx16 s[16:31], s[0:1], 0')
    a('s_load_dwordx8 s[32:39], s[0:1], 64')
    a('s_load_dwordx4 s[40:43], s[0:1], 96')


def srd(a, d, ptr, nbytes, off=0):
    if off:
        a(f's_add_u32 s{d}, s{ptr}, 0x{off:x}')
        a(f's_addc_u32 s{d+1}, s{ptr+1}, 0')
        a(f's_and_b32 s{d+1}, s{d+1}, 0xffff')
    else:
        a(f's_mov_b32 s{d}, s{ptr}')
        a(f's_and_b32 s{d+1}, s{ptr+1}, 0xffff')
    a(f's_mov_b32 s{d+2}, 0x{nbytes:x}')
    a(f's_mov_b32 s{d+3}, 0x20000')


def csel(a, dst, x, y):
    a(f's_mov_b32 s101, {y}')
    a(f's_cselect_b32 {dst}, {x}, s101')


PROF = os.environ.get('PROF', '0') == '1'
NSTAMP = [0]


def stamp(a):
    if not PROF:
        return
    i = NSTAMP[0]
    NSTAMP[0] += 1
    assert i < 6
    a(f's_memtime s[{86+2*i}:{87+2*i}]')


def stamp_dump(a, wave_sgpr):
    if not PROF:
        return
    n = NSTAMP[0]
    NSTAMP[0] = 0
    a('s_memrealtime s[98:99]')
    a('s_waitcnt lgkmcnt(0) vmcnt(0)')
    a(f's_and_b32 s100, s{wave_sgpr}, 3')
    a('s_cmp_eq_u32 s100, 0')
    lab = f'PD{id(a)}_{len(a.lines)}'
    a(f's_cbranch_scc0 {lab}')
    a('s_and_b32 s100, s2, 63')
    a('s_cmp_eq_u32 s100, 0')
    a(f's_cbranch_scc0 {lab}')
    srd(a, 60, P_DBG, 256)
    a('s_lshr_b32 s100, s2, 6')
    a('s_lshl_b32 s100, s100, 6')
    a(f's_lshl_b32 s101, s{wave_sgpr}, 3')
    a('s_add_u32 s100, s100, s101')
    a('v_mov_b32 v1, 0')
    for i in range(n):
        a(f'v_mov_b32 v2, s{86+2*i}')
        a(f'buffer_store_dword v2, v1, s[60:63], s100 offen offset:{4*i}')
    a('v_mov_b32 v2, s98')
    a(f'buffer_store_dword v2, v1, s[60:63], s100 offen offset:28')
    a.label(lab)


def kernel_header(a, name):
    a.raw(f'.text\n.globl {name}\n.p2align 8\n.type {name},@function\n{name}:')


def kernel_desc(name, vgpr, sgpr=102):
    acc = (vgpr + 3) // 4 * 4
    return f'''.section .rodata,"a"
.p2align 6
.amdhsa_kernel {name}
  .amdhsa_next_free_vgpr {vgpr}
  .amdhsa_next_free_sgpr {sgpr}
  .amdhsa_accum_offset {acc}
  .amdhsa_group_segment_fixed_size 0
  .amdhsa_kernarg_size 112
  .amdhsa_user_sgpr_count 2
  .amdhsa_user_sgpr_kernarg_segment_ptr 1
  .amdhsa_system_sgpr_workgroup_id_x 1
.end_amdhsa_kernel
'''


def gemm_setup(a, TN, lda):
    WN = TN // 64
    WM = 8 // WN
    JM = (256 // WM) // 32
    SS = 16384 + TN * 64
    a('v_and_b32 v1, 63, v0')
    a('v_lshrrev_b32 v14, 6, v0')
    a('v_readfirstlane_b32 s64, v14')
    a(f's_and_b32 s69, s64, {WN-1}')
    a(f's_lshr_b32 s70, s64, {WN.bit_length()-1}')
    a('v_lshrrev_b32 v14, 2, v1')
    a('v_lshlrev_b32 v15, 5, v0')
    a('s_lshl_b32 s72, s64, 5')
    a('v_add_u32 v14, s72, v14')
    a(f's_mov_b32 s73, {lda}')
    a('v_mul_lo_u32 v14, v14, s73')
    a('v_lshrrev_b32 v15, 4, v1')
    a('v_and_b32 v16, 3, v1')
    a('v_xor_b32 v15, v15, v16')
    a('v_lshl_add_u32 v2, v15, 4, v14')
    a(f'v_add_u32 v3, {16*lda}, v2')
    if TN == 256:
        a('v_lshrrev_b32 v14, 5, v1')
        a('s_lshl_b32 s72, s64, 2')
        a('v_add_u32 v15, s72, v14')
        a('v_mul_lo_u32 v15, v15, s67')
        a('v_bfe_u32 v16, v1, 2, 3')
        a('v_and_b32 v17, 3, v1')
        a('v_xor_b32 v18, v16, v14')
        a('v_lshlrev_b32 v18, 6, v18')
        a('v_lshl_add_u32 v18, v17, 4, v18')
        a('v_add_u32 v4, v15, v18')
        a('v_xor_b32 v18, 2, v14')
        a('v_xor_b32 v18, v16, v18')
        a('v_lshlrev_b32 v18, 6, v18')
        a('v_lshl_add_u32 v18, v17, 4, v18')
        a('v_add_u32 v5, v15, v18')
        a('s_lshl_b32 s72, s67, 1')
        a('v_add_u32 v5, s72, v5')
    else:
        a('v_lshrrev_b32 v14, 4, v1')
        a('s_lshl_b32 s72, s64, 2')
        a('v_add_u32 v15, s72, v14')
        a('v_mul_lo_u32 v15, v15, s67')
        a('v_bfe_u32 v16, v1, 2, 2')
        a('v_and_b32 v17, 3, v1')
        a('v_xor_b32 v18, v16, v14')
        a('v_lshlrev_b32 v18, 6, v18')
        a('v_lshl_add_u32 v18, v17, 4, v18')
        a('v_add_u32 v4, v15, v18')
        a('v_mov_b32 v5, v4')
    a('v_and_b32 v14, 31, v1')
    a(f's_mul_i32 s72, s70, {(256//WM)*64}')
    a('v_lshlrev_b32 v14, 6, v14')
    a('v_add_u32 v14, s72, v14')
    a('v_lshrrev_b32 v15, 5, v1')
    a('v_bfe_u32 v16, v1, 2, 2')
    a('v_xor_b32 v15, v15, v16')
    a('v_lshl_add_u32 v6, v15, 4, v14')
    a('v_xor_b32 v7, 32, v6')
    a(f'v_add_u32 v8, {2*SS}, v6')
    a(f'v_add_u32 v9, {2*SS}, v7')
    RS = TN * 2
    a('v_lshrrev_b32 v14, 5, v1')
    a('v_lshlrev_b32 v14, 3, v14')
    a('v_bfe_u32 v15, v1, 2, 2')
    a('v_add_u32 v14, v14, v15')
    a(f'v_mul_u32_u24 v14, {RS}, v14')
    a('s_lshl_b32 s72, s69, 1')
    a('v_xor_b32 v15, s72, v15')
    a('v_lshl_add_u32 v14, v15, 6, v14')
    a('v_bfe_u32 v15, v1, 4, 1')
    a('v_lshl_add_u32 v14, v15, 5, v14')
    a('v_and_b32 v15, 3, v1')
    a('v_lshl_add_u32 v14, v15, 3, v14')
    a('v_add_u32 v10, 16384, v14')
    a('v_xor_b32 v11, 64, v10')
    a(f'v_add_u32 v12, {2*SS}, v10')
    a(f'v_add_u32 v13, {2*SS}, v11')
    a('s_lshl_b32 s71, s64, 11')
    if TN == 256:
        a('s_mov_b32 s74, s71')
    else:
        a('s_lshl_b32 s74, s64, 10')


def gemm_main(a, TN, nst, w_stage_hook=None, pre_loop_hook=None):
    WN = TN // 64
    WM = 8 // WN
    JM = (256 // WM) // 32
    SS = 16384 + TN * 64
    RS = TN * 2

    def dma_list(s):
        buf = s % 4
        base = buf * SS
        L = []
        for t in range(2):
            def f(t=t):
                a(f's_add_u32 m0, s71, {base + t*1024}')
                a(f'buffer_load_dwordx4 v{2+t}, s[44:47], s65 offen lds', tag=('st', s))
                if t == 1:
                    a('s_add_u32 s65, s65, 64')
            L.append(f)
        nw = 2 if TN == 256 else 1
        for t in range(nw):
            def f(t=t):
                if t == 0 and w_stage_hook:
                    w_stage_hook(s)
                a(f's_add_u32 m0, s74, {base + 16384 + t*1024}')
                a(f'buffer_load_dwordx4 v{4+t}, s[48:51], s66 offen lds', tag=('st', s))
                if t == nw - 1:
                    a('s_add_u32 s66, s66, s68')
            L.append(f)
        return L

    def read_list(s, ks, b):
        buf = s % 4
        win = buf // 2
        so = (buf % 2) * SS
        L = []
        for i in range(2):
            for j in range(2):
                r = 32 + b * 8 + i * 4 + j * 2
                L.append(lambda r=r, i=i, j=j: a(f'ds_read_b64_tr_b16 v[{r}:{r+1}], v{10 + win*2 + i} offset:{so + (16*ks + 4*j)*RS}', tag=('fr', s, ks)))
        for jm in range(JM):
            r = 48 + b * 16 + jm * 4
            L.append(lambda r=r, jm=jm: a(f'ds_read_b128 v[{r}:{r+3}], v{6 + win*2 + ks} offset:{so + jm*2048}', tag=('fr', s, ks)))
        return L

    def mfmas(b, first, fill):
        n = 2 * JM
        per = (len(fill) + n - 1) // n if fill else 0
        k = 0
        for i in range(2):
            for jm in range(JM):
                acc = 128 + (i * JM + jm) * 16
                c = '0' if first else f'v[{acc}:{acc+15}]'
                a(f'v_mfma_f32_32x32x16_bf16 v[{acc}:{acc+15}], v[{32+b*8+i*4}:{32+b*8+i*4+3}], v[{48+b*16+jm*4}:{48+b*16+jm*4+3}], {c}')
                for _ in range(per):
                    if k < len(fill):
                        fill[k]()
                        k += 1
        while k < len(fill):
            fill[k]()
            k += 1

    for s in range(min(3, nst)):
        for f in dma_list(s):
            f()
    if pre_loop_hook:
        pre_loop_hook()
    a.wait_vm(('st', 0))
    a('s_barrier')
    stamp(a)
    for f in read_list(0, 0, 0):
        f()
    for s in range(nst):
        a.wait_lg(('fr', s, 0))
        mfmas(0, s == 0, read_list(s, 1, 1))
        fill = []
        if s + 1 < nst:
            a.wait_vm(('st', s + 1))
            a('s_barrier')
            fill = read_list(s + 1, 0, 0)
            if s + 3 < nst:
                fill = fill + dma_list(s + 3)
        a.wait_lg(('fr', s, 1))
        mfmas(1, False, fill)
    stamp(a)


def epi_bf16_store(a, JM, sbase, rowstep, vofs, src_of):
    pass


def epilogue_qkv(a, JM=4, scale=False):
    if scale:
        a('s_mov_b32 s77, 0x3e0293ee')
        for i in range(JM * 32):
            a(f'v_mul_f32 v{128+i}, s77, v{128+i}')
    a('v_and_b32 v14, 31, v1')
    a('v_lshlrev_b32 v14, 8, v14')
    a('v_lshrrev_b32 v15, 5, v1')
    a('v_lshl_add_u32 v14, v15, 4, v14')
    n = 0
    for jm in range(JM):
        a(f's_add_u32 s76, s75, {jm*32*256}')
        for i in range(2):
            acc = 128 + (i * JM + jm) * 16
            t = 80 + (n % 4) * 8
            n += 1
            for g in range(4):
                a(f'v_cvt_pk_bf16_f32 v{t+2*g}, v{acc+4*g}, v{acc+4*g+1}')
                a(f'v_cvt_pk_bf16_f32 v{t+2*g+1}, v{acc+4*g+2}, v{acc+4*g+3}')
            for k in (0, 2):
                b = t + 2 * k
                a(f'v_permlane32_swap_b32 v{b}, v{b+2}')
                a(f'v_permlane32_swap_b32 v{b+1}, v{b+3}')
                a(f'buffer_store_dwordx4 v[{b}:{b+3}], v14, s[52:55], s76 offen offset:{i*64 + k*16}')


def epilogue_ffn(a, JM=4):
    a('v_lshrrev_b32 v15, 5, v1')
    a('v_lshlrev_b32 v16, 3, v15')
    for i in range(2):
        for g in range(4):
            r = 16 + 0
    for i in range(2):
        for g in range(4):
            r = 96 + (i * 4 + g) * 2
            a(f'buffer_load_dwordx2 v[{r}:{r+1}], v16, s[56:59], s77 offen offset:{i*64 + g*16}', tag='bias')
    a('v_and_b32 v14, 31, v1')
    a(f's_mov_b32 s76, {LDCH}')
    a('v_mul_lo_u32 v14, v14, s76')
    a('v_lshl_add_u32 v14, v15, 4, v14')
    a.wait_vm('bias')
    for i in range(2):
        for g in range(4):
            r = 96 + (i * 4 + g) * 2
            o = 32 + (i * 4 + g) * 4
            a(f'v_lshlrev_b32 v{o}, 16, v{r}')
            a(f'v_and_b32 v{o+1}, 0xffff0000, v{r}')
            a(f'v_lshlrev_b32 v{o+2}, 16, v{r+1}')
            a(f'v_and_b32 v{o+3}, 0xffff0000, v{r+1}')
    n = 0
    for jm in range(JM):
        a(f's_add_u32 s76, s75, {jm*32*LDCH}')
        for i in range(2):
            acc = 128 + (i * JM + jm) * 16
            t = 80 + (n % 2) * 8
            n += 1
            for g in range(4):
                for h in range(2):
                    r0 = acc + 4 * g + 2 * h
                    bo = 32 + (i * 4 + g) * 4 + 2 * h
                    d = t + 2 * g + h
                    a(f'v_cvt_pk_bf16_f32 v112, v{r0}, v{r0+1}')
                    a(f'v_lshlrev_b32 v113, 16, v112')
                    a(f'v_and_b32 v114, 0xffff0000, v112')
                    a(f'v_add_f32 v113, v113, v{bo}')
                    a(f'v_add_f32 v114, v114, v{bo+1}')
                    a(f'v_cvt_pk_bf16_f32 v112, v113, v114')
                    a(f'v_lshlrev_b32 v113, 16, v112')
                    a(f'v_and_b32 v114, 0xffff0000, v112')
                    a(f'v_max_f32 v113, 0, v113')
                    a(f'v_max_f32 v114, 0, v114')
                    a(f'v_mul_f32 v113, v113, v113')
                    a(f'v_mul_f32 v114, v114, v114')
                    a(f'v_cvt_pk_bf16_f32 v{d}, v113, v114')
            for k in (0, 2):
                b = t + 2 * k
                a(f'v_permlane32_swap_b32 v{b}, v{b+2}')
                a(f'v_permlane32_swap_b32 v{b+1}, v{b+3}')
                a(f'buffer_store_dwordx4 v[{b}:{b+3}], v14, s[52:55], s76 offen offset:{i*64 + k*16}')


def epilogue_part(a, JM=2):
    a('v_and_b32 v14, 31, v1')
    a('v_lshlrev_b32 v14, 10, v14')
    a('v_lshrrev_b32 v15, 5, v1')
    a('v_lshl_add_u32 v14, v15, 4, v14')
    n = 0
    for jm in range(JM):
        a(f's_add_u32 s76, s75, {jm*32*1024}')
        for i in range(2):
            acc = 128 + (i * JM + jm) * 16
            t = 80 + (n % 4) * 8
            n += 1
            for g in range(4):
                a(f'v_cvt_pk_bf16_f32 v{t+2*g}, v{acc+4*g}, v{acc+4*g+1}')
                a(f'v_cvt_pk_bf16_f32 v{t+2*g+1}, v{acc+4*g+2}, v{acc+4*g+3}')
            for k in (0, 2):
                b = t + 2 * k
                a(f'v_permlane32_swap_b32 v{b}, v{b+2}')
                a(f'v_permlane32_swap_b32 v{b+1}, v{b+3}')
                a(f'buffer_store_dwordx4 v[{b}:{b+3}], v14, s[52:55], s76 offen offset:{i*64 + k*16}')


def wave_allreduce_add(a, v, t):
    for off in (0x041F, 0x081F, 0x101F, 0x201F, 0x401F):
        a(f'ds_swizzle_b32 v{t}, v{v} offset:0x{off:04X}')
        a('s_waitcnt lgkmcnt(0)')
        a(f'v_add_f32 v{v}, v{v}, v{t}')
    a(f'v_mov_b32 v{t}, v{v}')
    a(f'v_mov_b32 v{t+1}, v{v}')
    a(f'v_permlane32_swap_b32 v{t}, v{t+1}')
    a(f'v_add_f32 v{v}, v{t}, v{t+1}')


def bf16_round(a, v, t):
    a(f'v_cvt_pk_bf16_f32 v{t}, v{v}, v{v}')
    a(f'v_lshlrev_b32 v{v}, 16, v{t}')


def layernorm_row(a):
    for i in range(4):
        a(f'v_lshlrev_b32 v{84+2*i}, 16, v{80+i}')
        a(f'v_and_b32 v{85+2*i}, 0xffff0000, v{80+i}')
    a('v_add_f32 v92, v84, v85')
    for i in range(2, 8):
        a(f'v_add_f32 v92, v92, v{84+i}')
    wave_allreduce_add(a, 92, 93)
    a('v_mul_f32 v92, 0x3b000000, v92')
    a('v_mov_b32 v95, 0')
    for i in range(8):
        a(f'v_sub_f32 v93, v{84+i}, v92')
        a('v_fmac_f32 v95, v93, v93')
    wave_allreduce_add(a, 95, 93)
    a('v_mul_f32 v95, 0x3b000000, v95')
    bf16_round(a, 92, 93)
    bf16_round(a, 95, 93)
    a('v_add_f32 v95, 0x3727c5ac, v95')
    bf16_round(a, 95, 93)
    a('v_sqrt_f32 v95, v95')
    bf16_round(a, 95, 93)
    a('v_rcp_f32 v95, v95')
    for i in range(8):
        a(f'v_sub_f32 v{84+i}, v{84+i}, v92')
    for i in range(4):
        a(f'v_cvt_pk_bf16_f32 v{80+i}, v{84+2*i}, v{85+2*i}')
    for i in range(4):
        a(f'v_lshlrev_b32 v{84+2*i}, 16, v{80+i}')
        a(f'v_and_b32 v{85+2*i}, 0xffff0000, v{80+i}')
    for i in range(8):
        a(f'v_mul_f32 v{84+i}, v{84+i}, v95')
    for i in range(4):
        a(f'v_cvt_pk_bf16_f32 v{80+i}, v{84+2*i}, v{85+2*i}')
    a('buffer_store_dwordx4 v[80:83], v19, s[60:63], 0 offen', tag='lnst')


def k1_kv(a):
    name = 'k1_kv_kernel'
    kernel_header(a, name)
    a.reset_counters()
    a('s_cmp_ge_u32 s2, 256')
    a('s_cbranch_scc1 K1_END')
    stamp(a)
    load_kernargs(a)
    a('s_and_b32 s3, s2, 7')
    a('s_lshr_b32 s4, s2, 3')
    a('s_and_b32 s5, s4, 3')
    a('s_lshl_b32 s3, s3, 2')
    a('s_add_u32 s3, s3, s5')
    a('s_lshr_b32 s4, s4, 2')
    a('s_waitcnt lgkmcnt(0)')
    srd(a, 44, P_CKV, 2048 * 1024)
    a('s_cmp_lt_u32 s3, 16')
    a(f's_cselect_b32 s48, s{P_WUK}, s{P_WUV}')
    a(f's_cselect_b32 s49, s{P_WUK+1}, s{P_WUV+1}')
    csel(a, 's5', f'0x{WS_K:x}', f'0x{WS_V:x}')
    a('s_and_b32 s49, s49, 0xffff')
    a(f's_mov_b32 s50, 0x{512*8192:x}')
    a('s_mov_b32 s51, 0x20000')
    a(f's_add_u32 s52, s{P_WS}, s5')
    a(f's_addc_u32 s53, s{P_WS+1}, 0')
    a('s_and_b32 s53, s53, 0xffff')
    a(f's_mov_b32 s54, 0x{16*MB:x}')
    a('s_mov_b32 s55, 0x20000')
    srd(a, 56, P_X, 2048 * 1024)
    srd(a, 60, P_WS, 2048 * 1024, WS_XN)
    a('s_and_b32 s3, s3, 15')
    a('s_lshl_b32 s65, s4, 18')
    a('s_lshl_b32 s66, s3, 9')
    a('s_mov_b32 s67, 8192')
    a(f's_mov_b32 s68, {32*8192}')
    gemm_setup(a, 256, 1024)
    a('s_lshl_b32 s72, s2, 3')
    a('s_add_u32 s72, s72, s64')
    a('s_lshl_b32 s72, s72, 10')
    a('v_lshlrev_b32 v19, 4, v1')
    a('v_add_u32 v19, s72, v19')
    a('buffer_load_dwordx4 v[80:83], v19, s[56:59], 0 offen', tag='lnld')

    def ln_hook():
        a.wait_vm('lnld')
        layernorm_row(a)
        a.lg = []
    gemm_main(a, 256, 16, pre_loop_hook=ln_hook)
    a('s_lshl_b32 s72, s3, 8')
    a('s_lshl_b32 s73, s69, 6')
    a('s_add_u32 s72, s72, s73')
    a('s_lshr_b32 s73, s72, 7')
    a('s_lshl_b32 s75, s73, 19')
    a('s_and_b32 s73, s72, 127')
    a('s_lshl_b32 s73, s73, 1')
    a('s_add_u32 s75, s75, s73')
    a('s_lshl_b32 s73, s4, 16')
    a('s_add_u32 s75, s75, s73')
    a('s_lshl_b32 s73, s70, 15')
    a('s_add_u32 s75, s75, s73')
    epilogue_qkv(a)
    a.label('K1_PEND')
    if PROF:
        a('s_waitcnt vmcnt(0)')
    stamp(a)
    stamp_dump(a, 64)
    a.label('K1_END')
    a('s_endpgm')
    return name, kernel_desc(name, 256)


def k2_qh(a):
    name = 'k2_qh_kernel'
    kernel_header(a, name)
    a.reset_counters()
    a('s_cmp_ge_u32 s2, 184')
    a('s_cbranch_scc1 K2_END')
    stamp(a)
    load_kernargs(a)
    a('s_and_b32 s3, s2, 7')
    a('s_lshr_b32 s4, s2, 3')
    a('s_mul_i32 s3, s3, 23')
    a('s_add_u32 s3, s3, s4')
    a('s_and_b32 s4, s3, 7')
    a('s_lshr_b32 s3, s3, 3')
    a('s_waitcnt lgkmcnt(0)')
    srd(a, 44, P_WS, 2048 * 1024, WS_XN)
    a('s_cmp_lt_u32 s3, 16')
    a(f's_cselect_b32 s48, s{P_WQ}, s{P_W1}')
    a(f's_cselect_b32 s49, s{P_WQ+1}, s{P_W1+1}')
    csel(a, 's50', f'0x{512*8192:x}', f'0x{512*3584:x}')
    a('s_mov_b32 s51, 0x20000')
    csel(a, 's5', f'0x{WS_Q:x}', f'0x{WS_CH:x}')
    a('s_and_b32 s49, s49, 0xffff')
    a(f's_add_u32 s52, s{P_WS}, s5')
    a(f's_addc_u32 s53, s{P_WS+1}, 0')
    a('s_and_b32 s53, s53, 0xffff')
    a('s_cmp_lt_u32 s3, 16')
    csel(a, 's54', f'0x{16*MB:x}', f'0x{CH_BYTES:x}')
    a('s_mov_b32 s55, 0x20000')
    csel(a, 's67', f'8192', f'3584')
    csel(a, 's68', f'{32*8192}', f'{32*3584}')
    csel(a, 's6', f'0', f'1')
    srd(a, 56, P_B1, 1792 * 2)
    a('s_and_b32 s3, s3, 15')
    a('s_lshl_b32 s65, s4, 18')
    a('s_lshl_b32 s66, s3, 9')
    gemm_setup(a, 256, 1024)
    gemm_main(a, 256, 16)
    a('s_lshl_b32 s72, s3, 8')
    a('s_lshl_b32 s73, s69, 6')
    a('s_add_u32 s72, s72, s73')
    a('s_cmp_eq_u32 s6, 1')
    a('s_cbranch_scc1 K2_FFN')
    a('s_lshr_b32 s73, s72, 7')
    a('s_lshl_b32 s75, s73, 19')
    a('s_and_b32 s73, s72, 127')
    a('s_lshl_b32 s73, s73, 1')
    a('s_add_u32 s75, s75, s73')
    a('s_lshl_b32 s73, s4, 16')
    a('s_add_u32 s75, s75, s73')
    a('s_lshl_b32 s73, s70, 15')
    a('s_add_u32 s75, s75, s73')
    epilogue_qkv(a, scale=True)
    a('s_branch K2_PEND')
    a.label('K2_FFN')
    a('s_nop 15')
    a('s_lshl_b32 s77, s72, 1')
    a('s_lshl_b32 s73, s4, 8')
    a('s_lshl_b32 s75, s70, 7')
    a('s_add_u32 s73, s73, s75')
    a(f's_mul_i32 s75, s73, {LDCH}')
    a('s_add_u32 s75, s75, s77')
    a('s_add_u32 s75, s75, 8192')
    a.vm = []
    epilogue_ffn(a)
    a.label('K2_PEND')
    if PROF:
        a('s_waitcnt vmcnt(0)')
    stamp(a)
    stamp_dump(a, 64)
    a.label('K2_END')
    a('s_endpgm')
    return name, kernel_desc(name, 256)


def k4_out(a):
    name = 'k4_out_kernel'
    kernel_header(a, name)
    a.reset_counters()
    a('s_cmp_ge_u32 s2, 256')
    a('s_cbranch_scc1 K4_END')
    stamp(a)
    load_kernargs(a)
    a('s_and_b32 s3, s2, 7')
    a('s_lshr_b32 s4, s2, 3')
    a('s_and_b32 s5, s4, 3')
    a('s_lshr_b32 s4, s4, 2')
    a('s_waitcnt lgkmcnt(0)')
    srd(a, 44, P_WS, CH_BYTES, WS_CH)
    srd(a, 52, P_WS, NSPLIT * 2 * MB, WS_PART)
    a('s_and_b32 s27, s27, 0xffff')
    a('s_and_b32 s35, s35, 0xffff')
    a('s_mov_b32 s51, 0x20000')
    a('s_mul_i32 s6, s3, 736')
    a(f's_mul_i32 s65, s4, {256*LDCH}')
    a('s_lshl_b32 s72, s6, 1')
    a('s_add_u32 s65, s65, s72')
    a('s_lshl_b32 s7, s5, 8')
    a('s_mov_b32 s67, 1024')
    a('s_mov_b32 s68, 0')
    gemm_setup(a, 128, LDCH)

    def whook(s):
        a('s_cmp_lt_u32 s6, 4096')
        a(f's_cselect_b32 s48, s{P_WO}, s{P_W2}')
        a(f's_cselect_b32 s49, s{P_WO+1}, s{P_W2+1}')
        csel(a, 's50', f'0x{4096*1024:x}', f'0x{1792*1024:x}')
        csel(a, 's72', f'0', f'4096')
        a('s_sub_u32 s72, s6, s72')
        a('s_lshl_b32 s66, s72, 10')
        a('s_add_u32 s66, s66, s7')
        a('s_add_u32 s6, s6, 32')
    gemm_main(a, 128, 23, w_stage_hook=whook)
    a('s_lshl_b32 s75, s3, 21')
    a('s_lshl_b32 s72, s4, 18')
    a('s_add_u32 s75, s75, s72')
    a('s_lshl_b32 s72, s70, 16')
    a('s_add_u32 s75, s75, s72')
    a('s_lshl_b32 s72, s5, 8')
    a('s_add_u32 s75, s75, s72')
    a('s_lshl_b32 s72, s69, 7')
    a('s_add_u32 s75, s75, s72')
    epilogue_part(a)
    a.label('K4_PEND')
    if PROF:
        a('s_waitcnt vmcnt(0)')
    stamp(a)
    stamp_dump(a, 64)
    a.label('K4_END')
    a('s_endpgm')
    return name, kernel_desc(name, 192)


def k5_red(a):
    name = 'k5_red_kernel'
    kernel_header(a, name)
    a.reset_counters()
    a('s_cmp_ge_u32 s2, 512')
    a('s_cbranch_scc1 K5_END')
    load_kernargs(a)
    a('s_lshl_b32 s3, s2, 8')
    a('v_add_u32 v1, s3, v0')
    a('v_lshlrev_b32 v2, 4, v1')
    a('v_lshlrev_b32 v3, 5, v1')
    a('v_and_b32 v4, 63, v1')
    a('v_lshlrev_b32 v4, 4, v4')
    a('s_waitcnt lgkmcnt(0)')
    srd(a, 44, P_WS, NSPLIT * 2 * MB, WS_PART)
    srd(a, 48, P_X, 2 * MB)
    srd(a, 52, P_OUT, 2 * MB)
    srd(a, 56, P_B2, 1024)
    a('buffer_load_dwordx4 v[8:11], v2, s[48:51], 0 offen', tag='x')
    a('buffer_load_dwordx4 v[12:15], v4, s[56:59], 0 offen', tag='x')
    for s in range(NSPLIT):
        a(f's_mov_b32 s4, 0x{s*2*MB:x}')
        a(f'buffer_load_dwordx4 v[{16+s*4}:{19+s*4}], v2, s[44:47], s4 offen', tag=('p', s))
    a.wait_vm('x')
    for i in range(4):
        a(f'v_lshlrev_b32 v{96+2*i}, 16, v{8+i}')
        a(f'v_and_b32 v{97+2*i}, 0xffff0000, v{8+i}')
        a(f'v_lshlrev_b32 v{104+2*i}, 16, v{12+i}')
        a(f'v_and_b32 v{105+2*i}, 0xffff0000, v{12+i}')
    for i in range(8):
        a(f'v_add_f32 v{96+i}, v{96+i}, v{104+i}')
    for s in range(NSPLIT):
        a.wait_vm(('p', s))
        for i in range(4):
            a(f'v_lshlrev_b32 v104, 16, v{16+s*4+i}')
            a(f'v_and_b32 v105, 0xffff0000, v{16+s*4+i}')
            a(f'v_add_f32 v{96+2*i}, v{96+2*i}, v104')
            a(f'v_add_f32 v{97+2*i}, v{97+2*i}, v105')
    for i in range(4):
        a(f'v_cvt_pk_bf16_f32 v{8+i}, v{96+2*i}, v{97+2*i}')
    a('buffer_store_dwordx4 v[8:11], v2, s[52:55], 0 offen')
    a.label('K5_END')
    a('s_endpgm')
    return name, kernel_desc(name, 112)


def main():
    from attn import k3_attn
    a = Asm()
    descs = []
    launches = []
    n, d = k1_kv(a); descs.append(d); launches.append((n, 256, 512, 131072))
    n, d = k2_qh(a); descs.append(d); launches.append((n, 184, 512, 131072))
    n, d = k3_attn(a); descs.append(d); launches.append((n, 256, 512, 163840))
    n, d = k4_out(a); descs.append(d); launches.append((n, 256, 512, 98304))
    n, d = k5_red(a); descs.append(d); launches.append((n, 512, 256, 0))
    hdr = open(f'cdna_kernels/{NAME}.s.ref').read().split('; @launch')[0]
    out = hdr
    for (n, g, b, l) in launches:
        out += f'; @launch kernel={n} grid=({g},1,1) block=({b},1,1) lds={l}\n'
    out += '.amdgcn_target "amdgcn-amd-amdhsa--gfx950"\n'
    out += a.finalize()
    out += ''.join(descs)
    path = sys.argv[1] if len(sys.argv) > 1 else f'cdna_kernels/{NAME}.s'
    open(path, 'w').write(out)
    print('wrote', path, len(out), 'bytes')


if __name__ == '__main__':
    main()
```

```python
import sys, os
sys.path.insert(0, os.path.dirname(__file__))
from asmlib import Asm

NAME = 'parallel_sum__compressed_kv_cla__dense_activation_squared_relu__prompt'

MB = 1 << 20
WS_XN = 0
WS_Q = 16 * MB
WS_K = 32 * MB
WS_V = 48 * MB
WS_CH = 64 * MB
WS_PART = 96 * MB
LDCH = 5888 * 2
CH_BYTES = 2048 * LDCH
NSPLIT = 8

P_X, P_CKV, P_WQ, P_WUK, P_WUV, P_WO, P_BX, P_W1 = 16, 18, 20, 22, 24, 26, 28, 30
P_B1, P_W2, P_B2, P_OUT, P_DBG, P_WS = 32, 34, 36, 38, 40, 42


def load_kernargs(a):
    a('s_load_dwordx16 s[16:31], s[0:1], 0')
    a('s_load_dwordx8 s[32:39], s[0:1], 64')
    a('s_load_dwordx4 s[40:43], s[0:1], 96')


def srd(a, d, ptr, nbytes, off=0):
    if off:
        a(f's_add_u32 s{d}, s{ptr}, 0x{off:x}')
        a(f's_addc_u32 s{d+1}, s{ptr+1}, 0')
        a(f's_and_b32 s{d+1}, s{d+1}, 0xffff')
    else:
        a(f's_mov_b32 s{d}, s{ptr}')
        a(f's_and_b32 s{d+1}, s{ptr+1}, 0xffff')
    a(f's_mov_b32 s{d+2}, 0x{nbytes:x}')
    a(f's_mov_b32 s{d+3}, 0x20000')


def csel(a, dst, x, y):
    a(f's_mov_b32 s101, {y}')
    a(f's_cselect_b32 {dst}, {x}, s101')


PROF = os.environ.get('PROF', '0') == '1'
NSTAMP = [0]


def stamp(a):
    if not PROF:
        return
    i = NSTAMP[0]
    NSTAMP[0] += 1
    assert i < 6
    a(f's_memtime s[{86+2*i}:{87+2*i}]')


def stamp_dump(a, wave_sgpr):
    if not PROF:
        return
    n = NSTAMP[0]
    NSTAMP[0] = 0
    a('s_memrealtime s[98:99]')
    a('s_waitcnt lgkmcnt(0) vmcnt(0)')
    a(f's_and_b32 s100, s{wave_sgpr}, 3')
    a('s_cmp_eq_u32 s100, 0')
    lab = f'PD{id(a)}_{len(a.lines)}'
    a(f's_cbranch_scc0 {lab}')
    a('s_and_b32 s100, s2, 63')
    a('s_cmp_eq_u32 s100, 0')
    a(f's_cbranch_scc0 {lab}')
    srd(a, 60, P_DBG, 256)
    a('s_lshr_b32 s100, s2, 6')
    a('s_lshl_b32 s100, s100, 6')
    a(f's_lshl_b32 s101, s{wave_sgpr}, 3')
    a('s_add_u32 s100, s100, s101')
    a('v_mov_b32 v1, 0')
    for i in range(n):
        a(f'v_mov_b32 v2, s{86+2*i}')
        a(f'buffer_store_dword v2, v1, s[60:63], s100 offen offset:{4*i}')
    a('v_mov_b32 v2, s98')
    a(f'buffer_store_dword v2, v1, s[60:63], s100 offen offset:28')
    a.label(lab)


def kernel_header(a, name):
    a.raw(f'.text\n.globl {name}\n.p2align 8\n.type {name},@function\n{name}:')


def kernel_desc(name, vgpr, sgpr=102):
    acc = (vgpr + 3) // 4 * 4
    return f'''.section .rodata,"a"
.p2align 6
.amdhsa_kernel {name}
  .amdhsa_next_free_vgpr {vgpr}
  .amdhsa_next_free_sgpr {sgpr}
  .amdhsa_accum_offset {acc}
  .amdhsa_group_segment_fixed_size 0
  .amdhsa_kernarg_size 112
  .amdhsa_user_sgpr_count 2
  .amdhsa_user_sgpr_kernarg_segment_ptr 1
  .amdhsa_system_sgpr_workgroup_id_x 1
.end_amdhsa_kernel
'''


def w_voffsets(a, TN, sld, vd):
    if TN == 256:
        a('v_lshrrev_b32 v14, 5, v1')
        a('s_lshl_b32 s72, s64, 2')
        a('v_add_u32 v15, s72, v14')
        a(f'v_mul_lo_u32 v15, v15, s{sld}')
        a('v_bfe_u32 v16, v1, 2, 3')
        a('v_and_b32 v17, 3, v1')
        a('v_xor_b32 v18, v16, v14')
        a('v_lshlrev_b32 v18, 6, v18')
        a('v_lshl_add_u32 v18, v17, 4, v18')
        a(f'v_add_u32 v{vd}, v15, v18')
        a('v_xor_b32 v18, 2, v14')
        a('v_xor_b32 v18, v16, v18')
        a('v_lshlrev_b32 v18, 6, v18')
        a('v_lshl_add_u32 v18, v17, 4, v18')
        a(f'v_add_u32 v{vd+1}, v15, v18')
        a(f's_lshl_b32 s72, s{sld}, 1')
        a(f'v_add_u32 v{vd+1}, s72, v{vd+1}')
    else:
        a('v_lshrrev_b32 v14, 4, v1')
        a('s_lshl_b32 s72, s64, 2')
        a('v_add_u32 v15, s72, v14')
        a(f'v_mul_lo_u32 v15, v15, s{sld}')
        a('v_bfe_u32 v16, v1, 2, 2')
        a('v_and_b32 v17, 3, v1')
        a('v_xor_b32 v18, v16, v14')
        a('v_lshlrev_b32 v18, 6, v18')
        a('v_lshl_add_u32 v18, v17, 4, v18')
        a(f'v_add_u32 v{vd}, v15, v18')
        a(f'v_mov_b32 v{vd+1}, v{vd}')


def gemm_setup(a, TN, lda):
    WN = TN // 64
    WM = 8 // WN
    JM = (256 // WM) // 32
    SS = 16384 + TN * 64
    a('v_and_b32 v1, 63, v0')
    a('v_lshrrev_b32 v14, 6, v0')
    a('v_readfirstlane_b32 s64, v14')
    a(f's_and_b32 s69, s64, {WN-1}')
    a(f's_lshr_b32 s70, s64, {WN.bit_length()-1}')
    a('v_lshrrev_b32 v14, 2, v1')
    a('v_lshlrev_b32 v15, 5, v0')
    a('s_lshl_b32 s72, s64, 5')
    a('v_add_u32 v14, s72, v14')
    a(f's_mov_b32 s73, {lda}')
    a('v_mul_lo_u32 v14, v14, s73')
    a('v_lshrrev_b32 v15, 4, v1')
    a('v_and_b32 v16, 3, v1')
    a('v_xor_b32 v15, v15, v16')
    a('v_lshl_add_u32 v2, v15, 4, v14')
    a(f'v_add_u32 v3, {16*lda}, v2')
    w_voffsets(a, TN, 67, 4)
    a('v_and_b32 v14, 31, v1')
    a(f's_mul_i32 s72, s70, {(256//WM)*64}')
    a('v_lshlrev_b32 v14, 6, v14')
    a('v_add_u32 v14, s72, v14')
    a('v_lshrrev_b32 v15, 5, v1')
    a('v_bfe_u32 v16, v1, 2, 2')
    a('v_xor_b32 v15, v15, v16')
    a('v_lshl_add_u32 v6, v15, 4, v14')
    a('v_xor_b32 v7, 32, v6')
    a(f'v_add_u32 v8, {2*SS}, v6')
    a(f'v_add_u32 v9, {2*SS}, v7')
    RS = TN * 2
    a('v_lshrrev_b32 v14, 5, v1')
    a('v_lshlrev_b32 v14, 3, v14')
    a('v_bfe_u32 v15, v1, 2, 2')
    a('v_add_u32 v14, v14, v15')
    a(f'v_mul_u32_u24 v14, {RS}, v14')
    a('s_lshl_b32 s72, s69, 1')
    a('v_xor_b32 v15, s72, v15')
    a('v_lshl_add_u32 v14, v15, 6, v14')
    a('v_bfe_u32 v15, v1, 4, 1')
    a('v_lshl_add_u32 v14, v15, 5, v14')
    a('v_and_b32 v15, 3, v1')
    a('v_lshl_add_u32 v14, v15, 3, v14')
    a('v_add_u32 v10, 16384, v14')
    a('v_xor_b32 v11, 64, v10')
    a(f'v_add_u32 v12, {2*SS}, v10')
    a(f'v_add_u32 v13, {2*SS}, v11')
    a('s_lshl_b32 s71, s64, 11')
    if TN == 256:
        a('s_mov_b32 s74, s71')
    else:
        a('s_lshl_b32 s74, s64, 10')


PA = dict(act=44, w=48, s_act=65, s_w=66, s_wstep=68, vw=4)


def gemm_main(a, TN, tiles, pre_loop_hook=None):
    WN = TN // 64
    WM = 8 // WN
    JM = (256 // WM) // 32
    SS = 16384 + TN * 64
    RS = TN * 2
    stages = []
    for ti, t in enumerate(tiles):
        for k in range(t['nst']):
            stages.append((ti, k))
    nst = len(stages)

    def dma_list(s):
        ti, k = stages[s]
        P = tiles[ti]['params']
        hook = tiles[ti].get('w_stage_hook')
        buf = s % 4
        base = buf * SS
        L = []
        for t in range(2):
            def f(t=t):
                a(f's_add_u32 m0, s71, {base + t*1024}')
                a(f'buffer_load_dwordx4 v{2+t}, s[{P["act"]}:{P["act"]+3}], s{P["s_act"]} offen lds', tag=('st', s))
                if t == 1:
                    a(f's_add_u32 s{P["s_act"]}, s{P["s_act"]}, 64')
            L.append(f)
        nw = 2 if TN == 256 else 1
        for t in range(nw):
            def f(t=t):
                if t == 0 and hook:
                    hook(k)
                a(f's_add_u32 m0, s74, {base + 16384 + t*1024}')
                a(f'buffer_load_dwordx4 v{P["vw"]+t}, s[{P["w"]}:{P["w"]+3}], s{P["s_w"]} offen lds', tag=('st', s))
                if t == nw - 1:
                    a(f's_add_u32 s{P["s_w"]}, s{P["s_w"]}, s{P["s_wstep"]}')
            L.append(f)
        return L

    def read_list(s, ks, b):
        buf = s % 4
        win = buf // 2
        so = (buf % 2) * SS
        L = []
        for i in range(2):
            for j in range(2):
                r = 32 + b * 8 + i * 4 + j * 2
                L.append(lambda r=r, i=i, j=j: a(f'ds_read_b64_tr_b16 v[{r}:{r+1}], v{10 + win*2 + i} offset:{so + (16*ks + 4*j)*RS}', tag=('fr', s, ks)))
        for jm in range(JM):
            r = 48 + b * 16 + jm * 4
            L.append(lambda r=r, jm=jm: a(f'ds_read_b128 v[{r}:{r+3}], v{6 + win*2 + ks} offset:{so + jm*2048}', tag=('fr', s, ks)))
        return L

    def mfmas(b, first, fill):
        n = 2 * JM
        per = (len(fill) + n - 1) // n if fill else 0
        k = 0
        for i in range(2):
            for jm in range(JM):
                acc = 128 + (i * JM + jm) * 16
                c = '0' if first else f'v[{acc}:{acc+15}]'
                a(f'v_mfma_f32_32x32x16_bf16 v[{acc}:{acc+15}], v[{32+b*8+i*4}:{32+b*8+i*4+3}], v[{48+b*16+jm*4}:{48+b*16+jm*4+3}], {c}')
                for _ in range(per):
                    if k < len(fill):
                        fill[k]()
                        k += 1
        while k < len(fill):
            fill[k]()
            k += 1

    for s in range(min(3, nst)):
        for f in dma_list(s):
            f()
    if pre_loop_hook:
        pre_loop_hook()
    a.wait_vm(('st', 0))
    a('s_barrier')
    stamp(a)
    for f in read_list(0, 0, 0):
        f()
    for s in range(nst):
        ti, k = stages[s]
        a.wait_lg(('fr', s, 0))
        mfmas(0, k == 0, read_list(s, 1, 1))
        fill = []
        if s + 1 < nst:
            a.wait_vm(('st', s + 1))
            a('s_barrier')
            fill = read_list(s + 1, 0, 0)
            if s + 3 < nst:
                fill = fill + dma_list(s + 3)
        a.wait_lg(('fr', s, 1))
        mfmas(1, False, fill)
        if k == tiles[ti]['nst'] - 1:
            stamp(a)
            if tiles[ti].get('mid_hook'):
                tiles[ti]['mid_hook']()


def epi_bf16_store(a, JM, sbase, rowstep, vofs, src_of):
    pass


def epilogue_qkv(a, JM=4, scale=False):
    if scale:
        a('s_mov_b32 s77, 0x3e0293ee')
        for i in range(JM * 32):
            a(f'v_mul_f32 v{128+i}, s77, v{128+i}')
    a('v_and_b32 v14, 31, v1')
    a('v_lshlrev_b32 v14, 8, v14')
    a('v_lshrrev_b32 v15, 5, v1')
    a('v_lshl_add_u32 v14, v15, 4, v14')
    n = 0
    for jm in range(JM):
        a(f's_add_u32 s76, s75, {jm*32*256}')
        for i in range(2):
            acc = 128 + (i * JM + jm) * 16
            t = 80 + (n % 4) * 8
            n += 1
            for g in range(4):
                a(f'v_cvt_pk_bf16_f32 v{t+2*g}, v{acc+4*g}, v{acc+4*g+1}')
                a(f'v_cvt_pk_bf16_f32 v{t+2*g+1}, v{acc+4*g+2}, v{acc+4*g+3}')
            for k in (0, 2):
                b = t + 2 * k
                a(f'v_permlane32_swap_b32 v{b}, v{b+2}')
                a(f'v_permlane32_swap_b32 v{b+1}, v{b+3}')
                a(f'buffer_store_dwordx4 v[{b}:{b+3}], v14, s[52:55], s76 offen offset:{i*64 + k*16}')


def epilogue_ffn(a, JM=4):
    a('v_lshrrev_b32 v15, 5, v1')
    a('v_lshlrev_b32 v16, 3, v15')
    for i in range(2):
        for g in range(4):
            r = 16 + 0
    for i in range(2):
        for g in range(4):
            r = 96 + (i * 4 + g) * 2
            a(f'buffer_load_dwordx2 v[{r}:{r+1}], v16, s[56:59], s77 offen offset:{i*64 + g*16}', tag='bias')
    a('v_and_b32 v14, 31, v1')
    a(f's_mov_b32 s76, {LDCH}')
    a('v_mul_lo_u32 v14, v14, s76')
    a('v_lshl_add_u32 v14, v15, 4, v14')
    a.wait_vm('bias')
    for i in range(2):
        for g in range(4):
            r = 96 + (i * 4 + g) * 2
            o = 32 + (i * 4 + g) * 4
            a(f'v_lshlrev_b32 v{o}, 16, v{r}')
            a(f'v_and_b32 v{o+1}, 0xffff0000, v{r}')
            a(f'v_lshlrev_b32 v{o+2}, 16, v{r+1}')
            a(f'v_and_b32 v{o+3}, 0xffff0000, v{r+1}')
    n = 0
    for jm in range(JM):
        a(f's_add_u32 s76, s75, {jm*32*LDCH}')
        for i in range(2):
            acc = 128 + (i * JM + jm) * 16
            t = 80 + (n % 2) * 8
            n += 1
            for g in range(4):
                for h in range(2):
                    r0 = acc + 4 * g + 2 * h
                    bo = 32 + (i * 4 + g) * 4 + 2 * h
                    d = t + 2 * g + h
                    a(f'v_cvt_pk_bf16_f32 v112, v{r0}, v{r0+1}')
                    a(f'v_lshlrev_b32 v113, 16, v112')
                    a(f'v_and_b32 v114, 0xffff0000, v112')
                    a(f'v_add_f32 v113, v113, v{bo}')
                    a(f'v_add_f32 v114, v114, v{bo+1}')
                    a(f'v_cvt_pk_bf16_f32 v112, v113, v114')
                    a(f'v_lshlrev_b32 v113, 16, v112')
                    a(f'v_and_b32 v114, 0xffff0000, v112')
                    a(f'v_max_f32 v113, 0, v113')
                    a(f'v_max_f32 v114, 0, v114')
                    a(f'v_mul_f32 v113, v113, v113')
                    a(f'v_mul_f32 v114, v114, v114')
                    a(f'v_cvt_pk_bf16_f32 v{d}, v113, v114')
            for k in (0, 2):
                b = t + 2 * k
                a(f'v_permlane32_swap_b32 v{b}, v{b+2}')
                a(f'v_permlane32_swap_b32 v{b+1}, v{b+3}')
                a(f'buffer_store_dwordx4 v[{b}:{b+3}], v14, s[52:55], s76 offen offset:{i*64 + k*16}')


def epilogue_part(a, JM=2):
    a('v_and_b32 v14, 31, v1')
    a('v_lshlrev_b32 v14, 10, v14')
    a('v_lshrrev_b32 v15, 5, v1')
    a('v_lshl_add_u32 v14, v15, 4, v14')
    n = 0
    for jm in range(JM):
        a(f's_add_u32 s76, s75, {jm*32*1024}')
        for i in range(2):
            acc = 128 + (i * JM + jm) * 16
            t = 80 + (n % 4) * 8
            n += 1
            for g in range(4):
                a(f'v_cvt_pk_bf16_f32 v{t+2*g}, v{acc+4*g}, v{acc+4*g+1}')
                a(f'v_cvt_pk_bf16_f32 v{t+2*g+1}, v{acc+4*g+2}, v{acc+4*g+3}')
            for k in (0, 2):
                b = t + 2 * k
                a(f'v_permlane32_swap_b32 v{b}, v{b+2}')
                a(f'v_permlane32_swap_b32 v{b+1}, v{b+3}')
                a(f'buffer_store_dwordx4 v[{b}:{b+3}], v14, s[52:55], s76 offen offset:{i*64 + k*16}')


def wave_allreduce_add(a, v, t):
    for off in (0x041F, 0x081F, 0x101F, 0x201F, 0x401F):
        a(f'ds_swizzle_b32 v{t}, v{v} offset:0x{off:04X}')
        a('s_waitcnt lgkmcnt(0)')
        a(f'v_add_f32 v{v}, v{v}, v{t}')
    a(f'v_mov_b32 v{t}, v{v}')
    a(f'v_mov_b32 v{t+1}, v{v}')
    a(f'v_permlane32_swap_b32 v{t}, v{t+1}')
    a(f'v_add_f32 v{v}, v{t}, v{t+1}')


def bf16_round(a, v, t):
    a(f'v_cvt_pk_bf16_f32 v{t}, v{v}, v{v}')
    a(f'v_lshlrev_b32 v{v}, 16, v{t}')


def layernorm_row(a):
    for i in range(4):
        a(f'v_lshlrev_b32 v{84+2*i}, 16, v{80+i}')
        a(f'v_and_b32 v{85+2*i}, 0xffff0000, v{80+i}')
    a('v_add_f32 v92, v84, v85')
    for i in range(2, 8):
        a(f'v_add_f32 v92, v92, v{84+i}')
    wave_allreduce_add(a, 92, 93)
    a('v_mul_f32 v92, 0x3b000000, v92')
    a('v_mov_b32 v95, 0')
    for i in range(8):
        a(f'v_sub_f32 v93, v{84+i}, v92')
        a('v_fmac_f32 v95, v93, v93')
    wave_allreduce_add(a, 95, 93)
    a('v_mul_f32 v95, 0x3b000000, v95')
    bf16_round(a, 92, 93)
    bf16_round(a, 95, 93)
    a('v_add_f32 v95, 0x3727c5ac, v95')
    bf16_round(a, 95, 93)
    a('v_sqrt_f32 v95, v95')
    bf16_round(a, 95, 93)
    a('v_rcp_f32 v95, v95')
    for i in range(8):
        a(f'v_sub_f32 v{84+i}, v{84+i}, v92')
    for i in range(4):
        a(f'v_cvt_pk_bf16_f32 v{80+i}, v{84+2*i}, v{85+2*i}')
    for i in range(4):
        a(f'v_lshlrev_b32 v{84+2*i}, 16, v{80+i}')
        a(f'v_and_b32 v{85+2*i}, 0xffff0000, v{80+i}')
    for i in range(8):
        a(f'v_mul_f32 v{84+i}, v{84+i}, v95')
    for i in range(4):
        a(f'v_cvt_pk_bf16_f32 v{80+i}, v{84+2*i}, v{85+2*i}')
    a('buffer_store_dwordx4 v[80:83], v19, s[60:63], 0 offen', tag='lnst')


def k0_ln(a):
    name = 'k0_ln_kernel'
    kernel_header(a, name)
    a.reset_counters()
    a('s_cmp_ge_u32 s2, 512')
    a('s_cbranch_scc1 K0_END')
    load_kernargs(a)
    a('v_and_b32 v1, 63, v0')
    a('v_lshrrev_b32 v2, 6, v0')
    a('s_lshl_b32 s3, s2, 2')
    a('v_add_u32 v2, s3, v2')
    a('v_lshlrev_b32 v2, 10, v2')
    a('v_lshl_add_u32 v19, v1, 4, v2')
    a('s_waitcnt lgkmcnt(0)')
    srd(a, 56, P_X, 2048 * 1024)
    srd(a, 60, P_WS, 2048 * 1024, WS_XN)
    a('buffer_load_dwordx4 v[80:83], v19, s[56:59], 0 offen', tag='lnld')
    a.wait_vm('lnld')
    layernorm_row(a)
    a.label('K0_END')
    a('s_endpgm')
    return name, kernel_desc(name, 96)


def k12_proj(a):
    name = 'k12_proj_kernel'
    kernel_header(a, name)
    a.reset_counters()
    a('s_cmp_ge_u32 s2, 256')
    a('s_cbranch_scc1 K1_END')
    stamp(a)
    load_kernargs(a)
    a('s_and_b32 s3, s2, 7')
    a('s_lshr_b32 s4, s2, 3')
    a('s_and_b32 s5, s4, 3')
    a('s_lshl_b32 s3, s3, 2')
    a('s_add_u32 s3, s3, s5')
    a('s_lshr_b32 s4, s4, 2')
    a('s_and_b32 s60, s2, 7')
    a('s_lshr_b32 s61, s2, 3')
    a('s_mul_i32 s60, s60, 23')
    a('s_add_u32 s60, s60, s61')
    a('s_and_b32 s61, s60, 7')
    a('s_lshr_b32 s60, s60, 3')
    a('s_waitcnt lgkmcnt(0)')
    srd(a, 44, P_CKV, 2048 * 1024)
    a('s_cmp_lt_u32 s3, 16')
    a(f's_cselect_b32 s48, s{P_WUK}, s{P_WUV}')
    a(f's_cselect_b32 s49, s{P_WUK+1}, s{P_WUV+1}')
    csel(a, 's5', f'0x{WS_K:x}', f'0x{WS_V:x}')
    a('s_and_b32 s49, s49, 0xffff')
    a(f's_mov_b32 s50, 0x{512*8192:x}')
    a('s_mov_b32 s51, 0x20000')
    a(f's_add_u32 s52, s{P_WS}, s5')
    a(f's_addc_u32 s53, s{P_WS+1}, 0')
    a('s_and_b32 s53, s53, 0xffff')
    a(f's_mov_b32 s54, 0x{16*MB:x}')
    a('s_mov_b32 s55, 0x20000')
    a('s_and_b32 s3, s3, 15')
    a('s_lshl_b32 s65, s4, 18')
    a('s_lshl_b32 s66, s3, 9')
    a('s_mov_b32 s67, 8192')
    a(f's_mov_b32 s68, {32*8192}')
    srd(a, 8, P_WS, 2048 * 1024, WS_XN)
    a('s_cmp_lt_u32 s60, 16')
    a(f's_cselect_b32 s12, s{P_WQ}, s{P_W1}')
    a(f's_cselect_b32 s13, s{P_WQ+1}, s{P_W1+1}')
    csel(a, 's14', f'0x{512*8192:x}', f'0x{512*3584:x}')
    csel(a, 's62', '8192', '3584')
    csel(a, 's63', f'{32*8192}', f'{32*3584}')
    csel(a, 's6', '0', '1')
    a('s_mov_b32 s15, 0x20000')
    a('s_and_b32 s13, s13, 0xffff')
    a('s_cmp_lt_u32 s2, 184')
    a('s_cselect_b32 s10, s10, 0')
    a('s_cselect_b32 s14, s14, 0')
    a('s_and_b32 s60, s60, 15')
    a('s_lshl_b32 s78, s61, 18')
    a('s_lshl_b32 s79, s60, 9')
    srd(a, 56, P_B1, 1792 * 2)
    gemm_setup(a, 256, 1024)
    w_voffsets(a, 256, 62, 20)
    PB = dict(act=8, w=12, s_act=78, s_w=79, s_wstep=63, vw=20)

    def qkv_offsets(sn, sm):
        a(f's_lshl_b32 s72, s{sn}, 8')
        a('s_lshl_b32 s73, s69, 6')
        a('s_add_u32 s72, s72, s73')
        a('s_lshr_b32 s73, s72, 7')
        a('s_lshl_b32 s75, s73, 19')
        a('s_and_b32 s73, s72, 127')
        a('s_lshl_b32 s73, s73, 1')
        a('s_add_u32 s75, s75, s73')
        a(f's_lshl_b32 s73, s{sm}, 16')
        a('s_add_u32 s75, s75, s73')
        a('s_lshl_b32 s73, s70, 15')
        a('s_add_u32 s75, s75, s73')

    def epi_a():
        qkv_offsets(3, 4)
        epilogue_qkv(a)
        a('s_cmp_ge_u32 s2, 184')
        a('s_cbranch_scc1 K1_PEND')

    gemm_main(a, 256, [dict(nst=16, params=PA, mid_hook=epi_a), dict(nst=16, params=PB)])
    a('s_cmp_eq_u32 s6, 1')
    csel(a, 's5', f'0x{WS_CH:x}', f'0x{WS_Q:x}')
    csel(a, 's54', f'0x{CH_BYTES:x}', f'0x{16*MB:x}')
    a(f's_add_u32 s52, s{P_WS}, s5')
    a(f's_addc_u32 s53, s{P_WS+1}, 0')
    a('s_and_b32 s53, s53, 0xffff')
    a('s_cmp_eq_u32 s6, 1')
    a('s_cbranch_scc1 K2_FFN')
    qkv_offsets(60, 61)
    epilogue_qkv(a, scale=True)
    a('s_branch K1_PEND')
    a.label('K2_FFN')
    a('s_nop 15')
    a('s_lshl_b32 s72, s60, 8')
    a('s_lshl_b32 s73, s69, 6')
    a('s_add_u32 s72, s72, s73')
    a('s_lshl_b32 s77, s72, 1')
    a('s_lshl_b32 s73, s61, 8')
    a('s_lshl_b32 s75, s70, 7')
    a('s_add_u32 s73, s73, s75')
    a(f's_mul_i32 s75, s73, {LDCH}')
    a('s_add_u32 s75, s75, s77')
    a('s_add_u32 s75, s75, 8192')
    a.vm = []
    epilogue_ffn(a)
    a.label('K1_PEND')
    if PROF:
        a('s_waitcnt vmcnt(0)')
    stamp(a)
    stamp_dump(a, 64)
    a.label('K1_END')
    a('s_endpgm')
    return name, kernel_desc(name, 256)


def k4_out(a):
    name = 'k4_out_kernel'
    kernel_header(a, name)
    a.reset_counters()
    a('s_cmp_ge_u32 s2, 256')
    a('s_cbranch_scc1 K4_END')
    stamp(a)
    load_kernargs(a)
    a('s_and_b32 s3, s2, 7')
    a('s_lshr_b32 s4, s2, 3')
    a('s_and_b32 s5, s4, 3')
    a('s_lshr_b32 s4, s4, 2')
    a('s_waitcnt lgkmcnt(0)')
    srd(a, 44, P_WS, CH_BYTES, WS_CH)
    srd(a, 52, P_WS, NSPLIT * 2 * MB, WS_PART)
    a('s_and_b32 s27, s27, 0xffff')
    a('s_and_b32 s35, s35, 0xffff')
    a('s_mov_b32 s51, 0x20000')
    a('s_mul_i32 s6, s3, 736')
    a(f's_mul_i32 s65, s4, {256*LDCH}')
    a('s_lshl_b32 s72, s6, 1')
    a('s_add_u32 s65, s65, s72')
    a('s_lshl_b32 s7, s5, 8')
    a('s_mov_b32 s67, 1024')
    a('s_mov_b32 s68, 0')
    gemm_setup(a, 128, LDCH)

    def whook(s):
        a('s_cmp_lt_u32 s6, 4096')
        a(f's_cselect_b32 s48, s{P_WO}, s{P_W2}')
        a(f's_cselect_b32 s49, s{P_WO+1}, s{P_W2+1}')
        csel(a, 's50', f'0x{4096*1024:x}', f'0x{1792*1024:x}')
        csel(a, 's72', f'0', f'4096')
        a('s_sub_u32 s72, s6, s72')
        a('s_lshl_b32 s66, s72, 10')
        a('s_add_u32 s66, s66, s7')
        a('s_add_u32 s6, s6, 32')
    gemm_main(a, 128, [dict(nst=23, params=PA, w_stage_hook=whook)])
    a('s_lshl_b32 s75, s3, 21')
    a('s_lshl_b32 s72, s4, 18')
    a('s_add_u32 s75, s75, s72')
    a('s_lshl_b32 s72, s70, 16')
    a('s_add_u32 s75, s75, s72')
    a('s_lshl_b32 s72, s5, 8')
    a('s_add_u32 s75, s75, s72')
    a('s_lshl_b32 s72, s69, 7')
    a('s_add_u32 s75, s75, s72')
    epilogue_part(a)
    a.label('K4_PEND')
    if PROF:
        a('s_waitcnt vmcnt(0)')
    stamp(a)
    stamp_dump(a, 64)
    a.label('K4_END')
    a('s_endpgm')
    return name, kernel_desc(name, 192)


def k5_red(a):
    name = 'k5_red_kernel'
    kernel_header(a, name)
    a.reset_counters()
    a('s_cmp_ge_u32 s2, 512')
    a('s_cbranch_scc1 K5_END')
    load_kernargs(a)
    a('s_lshl_b32 s3, s2, 8')
    a('v_add_u32 v1, s3, v0')
    a('v_lshlrev_b32 v2, 4, v1')
    a('v_lshlrev_b32 v3, 5, v1')
    a('v_and_b32 v4, 63, v1')
    a('v_lshlrev_b32 v4, 4, v4')
    a('s_waitcnt lgkmcnt(0)')
    srd(a, 44, P_WS, NSPLIT * 2 * MB, WS_PART)
    srd(a, 48, P_X, 2 * MB)
    srd(a, 52, P_OUT, 2 * MB)
    srd(a, 56, P_B2, 1024)
    a('buffer_load_dwordx4 v[8:11], v2, s[48:51], 0 offen', tag='x')
    a('buffer_load_dwordx4 v[12:15], v4, s[56:59], 0 offen', tag='x')
    for s in range(NSPLIT):
        a(f's_mov_b32 s4, 0x{s*2*MB:x}')
        a(f'buffer_load_dwordx4 v[{16+s*4}:{19+s*4}], v2, s[44:47], s4 offen', tag=('p', s))
    a.wait_vm('x')
    for i in range(4):
        a(f'v_lshlrev_b32 v{96+2*i}, 16, v{8+i}')
        a(f'v_and_b32 v{97+2*i}, 0xffff0000, v{8+i}')
        a(f'v_lshlrev_b32 v{104+2*i}, 16, v{12+i}')
        a(f'v_and_b32 v{105+2*i}, 0xffff0000, v{12+i}')
    for i in range(8):
        a(f'v_add_f32 v{96+i}, v{96+i}, v{104+i}')
    for s in range(NSPLIT):
        a.wait_vm(('p', s))
        for i in range(4):
            a(f'v_lshlrev_b32 v104, 16, v{16+s*4+i}')
            a(f'v_and_b32 v105, 0xffff0000, v{16+s*4+i}')
            a(f'v_add_f32 v{96+2*i}, v{96+2*i}, v104')
            a(f'v_add_f32 v{97+2*i}, v{97+2*i}, v105')
    for i in range(4):
        a(f'v_cvt_pk_bf16_f32 v{8+i}, v{96+2*i}, v{97+2*i}')
    a('buffer_store_dwordx4 v[8:11], v2, s[52:55], 0 offen')
    a.label('K5_END')
    a('s_endpgm')
    return name, kernel_desc(name, 112)


def main():
    from attn import k3_attn
    a = Asm()
    descs = []
    launches = []
    n, d = k0_ln(a); descs.append(d); launches.append((n, 512, 256, 0))
    n, d = k12_proj(a); descs.append(d); launches.append((n, 256, 512, 131072))
    n, d = k3_attn(a); descs.append(d); launches.append((n, 256, 512, 163840))
    n, d = k4_out(a); descs.append(d); launches.append((n, 256, 512, 98304))
    n, d = k5_red(a); descs.append(d); launches.append((n, 512, 256, 0))
    hdr = open(f'cdna_kernels/{NAME}.s.ref').read().split('; @launch')[0]
    out = hdr
    for (n, g, b, l) in launches:
        out += f'; @launch kernel={n} grid=({g},1,1) block=({b},1,1) lds={l}\n'
    out += '.amdgcn_target "amdgcn-amd-amdhsa--gfx950"\n'
    out += a.finalize()
    out += ''.join(descs)
    path = sys.argv[1] if len(sys.argv) > 1 else f'cdna_kernels/{NAME}.s'
    open(path, 'w').write(out)
    print('wrote', path, len(out), 'bytes')


if __name__ == '__main__':
    main()
```

```python
import re

REG_RE = re.compile(r'^(v|a|s)(\d+)$')
RANGE_RE = re.compile(r'^(v|a|s)\[(\d+):(\d+)\]$')

TRANS = ('v_exp_f32', 'v_log_f32', 'v_rcp_f32', 'v_rsq_f32', 'v_sqrt_f32', 'v_sin_f32', 'v_cos_f32')


def regs_of(tok):
    tok = tok.strip()
    neg = tok.startswith('-')
    if neg:
        tok = tok[1:]
    m = re.match(r'^abs\((.*)\)$', tok)
    if m:
        tok = m.group(1)
    m = REG_RE.match(tok)
    if m:
        return {(m.group(1), int(m.group(2)))}
    m = RANGE_RE.match(tok)
    if m:
        return {(m.group(1), i) for i in range(int(m.group(2)), int(m.group(3)) + 1)}
    if tok == 'vcc':
        return {('s', 106), ('s', 107)}
    if tok == 'vcc_lo':
        return {('s', 106)}
    if tok == 'vcc_hi':
        return {('s', 107)}
    if tok == 'm0':
        return {('m0', 0)}
    if tok == 'exec':
        return {('exec', 0)}
    return set()


class Ins:
    __slots__ = ('text', 'mn', 'ops', 'mods', 'rd', 'wr', 'kind', 'passes', 'srcc', 'ab', 'nop')

    def __init__(self, text):
        self.text = text
        t = text.split(';')[0].strip()
        parts = t.split(None, 1)
        self.mn = parts[0]
        rest = parts[1] if len(parts) > 1 else ''
        extra_mods = re.findall(r'\b(?:neg_lo|neg_hi|op_sel|op_sel_hi|quad_perm):\[[^\]]*\]', rest)
        rest = re.sub(r'\b(?:neg_lo|neg_hi|op_sel|op_sel_hi|quad_perm):\[[^\]]*\]', '', rest).strip()
        ops = [o.strip() for o in rest.split(',')] if rest else []
        mods = []
        if ops:
            last = ops[-1].split()
            if last:
                ops[-1] = last[0]
                mods = last[1:]
        self.ops = ops
        self.mods = mods + extra_mods
        self.rd = set()
        self.wr = set()
        self.kind = 'other'
        self.passes = 0
        self.srcc = set()
        self.ab = set()
        self.nop = 1
        mn = self.mn
        R = regs_of
        if mn == 's_nop':
            self.kind = 'nop'
            self.nop = int(ops[0], 0) + 1
        elif mn.startswith('v_mfma'):
            self.kind = 'mfma'
            self.passes = 8 if '32x32' in mn else 4
            self.wr = R(ops[0])
            self.ab = R(ops[1]) | R(ops[2])
            self.srcc = R(ops[3])
            self.rd = self.ab | self.srcc
        elif mn.startswith('v_cmp'):
            self.kind = 'valu'
            self.wr = R(ops[0])
            for o in ops[1:]:
                self.rd |= R(o)
        elif mn in ('v_readfirstlane_b32', 'v_readlane_b32'):
            self.kind = 'valu'
            self.wr = R(ops[0])
            for o in ops[1:]:
                self.rd |= R(o)
        elif mn.startswith('v_permlane') and 'swap' in mn:
            self.kind = 'valu'
            self.wr = R(ops[0]) | R(ops[1])
            self.rd = set(self.wr)
        elif mn.startswith('v_'):
            self.kind = 'valu'
            self.wr = R(ops[0])
            k = 1
            if mn.startswith(('v_add_co', 'v_sub_co', 'v_addc_co', 'v_subb_co', 'v_subrev_co')):
                self.wr |= R(ops[1])
                k = 2
            for o in ops[k:]:
                self.rd |= R(o)
            if mn.startswith(('v_fmac', 'v_pk_fmac', 'v_dot2c')):
                self.rd |= R(ops[0])
            if mn.startswith('v_cndmask') and len(ops) == 3:
                self.rd |= R('vcc')
        elif mn.startswith('ds_'):
            self.kind = 'ds'
            if mn.startswith(('ds_read', 'ds_swizzle', 'ds_bpermute', 'ds_permute')):
                self.wr = R(ops[0])
                for o in ops[1:]:
                    self.rd |= R(o)
            else:
                for o in ops:
                    self.rd |= R(o)
        elif mn.startswith(('buffer_', 'global_')):
            self.kind = 'vmem'
            if 'load' in mn and 'lds' not in mods:
                self.wr = R(ops[0])
                for o in ops[1:]:
                    self.rd |= R(o)
            else:
                for o in ops:
                    self.rd |= R(o)
                if 'lds' in mods:
                    self.rd |= {('m0', 0)}
        elif mn.startswith('s_'):
            self.kind = 'salu'
            if mn.startswith(('s_cmp', 's_cbranch', 's_branch', 's_waitcnt', 's_barrier', 's_endpgm', 's_setprio', 's_sleep')):
                for o in ops:
                    self.rd |= R(o)
            else:
                if ops:
                    self.wr = R(ops[0])
                for o in ops[1:]:
                    self.rd |= R(o)

    def is_trans(self):
        return self.mn.split('_e')[0] in TRANS or self.mn in TRANS

    def wide_store(self):
        return self.kind == 'vmem' and 'store' in self.mn and ('x3' in self.mn or 'x4' in self.mn)

    def store_data(self):
        return regs_of(self.ops[0]) if self.kind == 'vmem' and 'store' in self.mn else set()


def vg(s):
    return {r for r in s if r[0] in ('v', 'a')}


def sg(s):
    return {r for r in s if r[0] == 's'}


def required(p, c):
    n = 0
    if p.kind == 'valu':
        pv = vg(p.wr)
        ps = sg(p.wr)
        if c.kind == 'mfma' and pv & c.rd:
            n = max(n, 2)
        if ps:
            if c.kind == 'valu' and ps & c.rd:
                n = max(n, 4 if c.mn in ('v_readlane_b32', 'v_writelane_b32') else 2)
            if c.kind == 'vmem' and ps & c.rd:
                n = max(n, 5)
        if c.mn in ('v_readfirstlane_b32', 'v_readlane_b32') and pv & c.rd:
            n = max(n, 1)
        if p.is_trans() and c.kind == 'valu' and not c.is_trans() and pv & (c.rd | c.wr):
            n = max(n, 1)
        if c.mn.startswith('v_permlane') and pv & c.rd:
            n = max(n, 2)
        if c.kind == 'valu' and any(m.startswith(('row_', 'quad_perm', 'wave_')) for m in c.mods) and pv & c.rd:
            n = max(n, 2)
    elif p.kind == 'mfma':
        big = p.passes == 8
        if c.kind == 'mfma':
            if p.wr & c.ab:
                n = max(n, 12 if big else 8)
            if p.wr & c.srcc:
                if p.wr == c.srcc and p.passes == c.passes:
                    n = max(n, 0)
                else:
                    n = max(n, 10 if big else 6)
        elif c.kind in ('valu', 'vmem', 'ds'):
            if p.wr & (c.rd | c.wr):
                n = max(n, 12 if big else 8)
            if c.kind == 'valu' and p.srcc & c.wr:
                n = max(n, 7 if big else 3)
    elif p.kind == 'salu':
        if ('m0', 0) in p.wr and c.kind == 'vmem' and 'lds' in c.mods:
            n = max(n, 1)
    elif p.kind == 'vmem' and p.wide_store():
        if p.store_data() & c.wr:
            n = max(n, 2 if c.kind == 'valu' else 1)
    return n


class Asm:
    def __init__(self):
        self.lines = []
        self.vm = []
        self.lg = []

    def raw(self, text):
        self.lines.append(('t', text))

    def label(self, name):
        self.lines.append(('l', name))

    def __call__(self, text, tag=None):
        for ln in text.strip().split('\n'):
            ln = ln.strip()
            if not ln or ln.startswith(';'):
                continue
            ins = Ins(ln)
            self.lines.append(('i', ins))
            if ins.kind == 'vmem':
                self.vm.append(tag)
            elif ins.kind == 'ds':
                self.lg.append(tag)

    def wait_vm(self, tag):
        if tag not in self.vm:
            return
        idx = max(i for i, t in enumerate(self.vm) if t == tag)
        n = len(self.vm) - 1 - idx
        assert n <= 63
        self(f's_waitcnt vmcnt({n})')
        self.vm = self.vm[idx + 1:]

    def wait_lg(self, tag):
        if tag not in self.lg:
            return
        idx = max(i for i, t in enumerate(self.lg) if t == tag)
        n = len(self.lg) - 1 - idx
        assert n <= 15, n
        self(f's_waitcnt lgkmcnt({n})')
        self.lg = self.lg[idx + 1:]

    def reset_counters(self):
        self.vm = []
        self.lg = []

    def finalize(self):
        out = []
        hist = []
        pos = 0
        for kind, x in self.lines:
            if kind != 'i':
                out.append((kind, x))
                continue
            need = 0
            for p, ppos in hist:
                r = required(p, x)
                if r:
                    dist = pos - ppos - 1
                    if dist < r:
                        need = max(need, r - dist)
            while need > 0:
                k = min(need, 16)
                nop = Ins(f's_nop {k - 1}')
                out.append(('i', nop))
                pos += k
                need -= k
            out.append(('i', x))
            hist.append((x, pos))
            pos += x.nop
            if len(hist) > 40:
                hist = hist[-40:]
        txt = []
        for kind, x in out:
            if kind == 'i':
                txt.append('    ' + x.text)
            elif kind == 'l':
                txt.append(x + ':')
            else:
                txt.append(x)
        return '\n'.join(txt) + '\n'
```

```python
from gen import *

QF = 32
SR = 64
PR = 96
FP = 112
OR = 144
TP = 208
CB = 208


def cstamp(a):
    if not PROF:
        return
    lab = f'CS{len(a.lines)}'
    a('s_lshl_b32 s100, s82, 8')
    a('s_add_u32 s100, s100, s70')
    a('s_cmp_eq_u32 s100, 3')
    a(f's_cbranch_scc0 {lab}')
    stamp(a)
    a.label(lab)


def m_phase(a, do_qk, do_pv, fill=()):
    a.lg = []
    seq = []
    if do_qk:
        for kt in range(2):
            for ds in range(8):
                seq.append(('k', kt, ds))
    if do_pv:
        for ks in range(4):
            for dt in range(4):
                seq.append(('v', dt, ks))
    D = 6

    def issue(n):
        kind, x, y = seq[n]
        r = FP + (n % 8) * 4
        if kind == 'k':
            a(f'ds_read_b128 v[{r}:{r+3}], v{8+y} offset:{x*8192}', tag=('f', n))
        else:
            for j in range(2):
                a(f'ds_read_b64_tr_b16 v[{r+2*j}:{r+2*j+1}], v{16+x} offset:{(16*y + 8*j)*256}', tag=('f', n))

    for n in range(min(D, len(seq))):
        issue(n)
    for n in range(len(seq)):
        kind, x, y = seq[n]
        r = FP + (n % 8) * 4
        a.wait_lg(('f', n))
        if kind == 'k':
            acc = SR + x * 16
            c = f'v[{CB}:{CB+15}]' if y == 0 else f'v[{acc}:{acc+15}]'
            a(f'v_mfma_f32_32x32x16_bf16 v[{acc}:{acc+15}], v[{r}:{r+3}], v[{QF+y*4}:{QF+y*4+3}], {c}')
        else:
            acc = OR + x * 16
            a(f'v_mfma_f32_32x32x16_bf16 v[{acc}:{acc+15}], v[{r}:{r+3}], v[{PR+y*4}:{PR+y*4+3}], v[{acc}:{acc+15}]')
        if n + D < len(seq):
            issue(n + D)
        if n % 2 == 1 and n // 2 < len(fill):
            fill[n // 2]()


def dma_k(a):
    a('s_mov_b32 m0, s80')
    a('s_add_u32 s72, s71, 32768')
    for t in range(4):
        a(f'buffer_load_dwordx4 v{2+t}, s[48:51], s72 offen offset:{t*1024} lds')
    a('s_xor_b32 s80, s80, 16384')


def dma_v(a):
    a('s_mov_b32 m0, s81')
    a('s_nop 0')
    for t in range(4):
        a(f'buffer_load_dwordx4 v6, s[52:55], s71 offen offset:{t*1024} lds')
    a('s_xor_b32 s81, s81, 16384')


def dma_fill(a):
    L = []
    for t in range(4):
        def f(t=t):
            a('s_mov_b32 m0, s80')
            a(f'buffer_load_dwordx4 v{2+t}, s[48:51], s72 offen offset:{t*1024} lds')
        L.append(f)
    for t in range(4):
        def f(t=t):
            a('s_mov_b32 m0, s81')
            a(f'buffer_load_dwordx4 v6, s[52:55], s71 offen offset:{t*1024} lds')
            if t == 3:
                a('s_xor_b32 s80, s80, 16384')
                a('s_xor_b32 s81, s81, 16384')
                a('s_add_u32 s71, s71, 32768')
        L.append(f)
    return L


def dma_pre(a):
    a('s_add_u32 s72, s71, 32768')
    a('s_cmp_eq_u32 s70, s69')
    a('s_cselect_b32 s72, s74, s72')


def v_phase(a):
    a('s_setprio 0')
    a('s_cmp_eq_u32 s70, s69')
    a('s_cbranch_scc0 K3_NOMASK')
    a('s_nop 15')
    for kt in range(2):
        for r0 in range(0, 16, 4):
            for k in range(4):
                r = r0 + k
                cst = kt * 32 + 8 * (r // 4) + r % 4
                a(f'v_cmp_gt_i32 s[{8+2*k}:{9+2*k}], {cst}, v22')
            for k in range(4):
                r = r0 + k
                a(f'v_cndmask_b32 v{SR+kt*16+r}, v{SR+kt*16+r}, v29, s[{8+2*k}:{9+2*k}]')
    a.label('K3_NOMASK')
    a('s_nop 15')
    a(f'v_max3_f32 v23, v{SR}, v{SR+1}, v{SR+2}')
    a(f'v_max3_f32 v24, v{SR+3}, v{SR+4}, v{SR+5}')
    for i in range(6, 30, 4):
        a(f'v_max3_f32 v23, v23, v{SR+i}, v{SR+i+1}')
        a(f'v_max3_f32 v24, v24, v{SR+i+2}, v{SR+i+3}')
    a(f'v_max3_f32 v23, v23, v{SR+30}, v{SR+31}')
    a('v_max_f32 v23, v23, v24')
    a('v_mov_b32 v24, v23')
    a('v_permlane32_swap_b32 v23, v24')
    a('v_max_f32 v23, v23, v24')
    a('s_cmp_eq_u32 s70, 0')
    a('s_cbranch_scc1 K3_RARE')
    a('v_cmp_lt_f32 vcc, 0x41a00000, v23')
    a('s_cbranch_vccz K3_SKIP')
    a.label('K3_RARE')
    a('s_cmp_eq_u32 s70, 0')
    csel(a, 's72', '0xff7fffff', '0')
    a('v_max_f32 v24, s72, v23')
    a('v_cmp_lt_f32 vcc, 0xefa18f08, v23')
    a('v_cndmask_b32 v24, 0, v24, vcc')
    a('v_add_f32 v20, v20, v24')
    a('v_sub_f32 v25, 0, v24')
    a('v_exp_f32 v25, v25')
    a('v_sub_f32 v26, 0, v20')
    for i in range(32):
        a(f'v_sub_f32 v{SR+i}, v{SR+i}, v24')
    for i in range(16):
        a(f'v_mov_b32 v{CB+i}, v26')
    a('s_cmp_eq_u32 s70, 0')
    a('s_cbranch_scc1 K3_SKIP')
    a('v_mul_f32 v21, v21, v25')
    for i in range(64):
        a(f'v_mul_f32 v{OR+i}, v{OR+i}, v25')
    a.label('K3_SKIP')
    for i in range(32):
        a(f'v_exp_f32 v{SR+i}, v{SR+i}')
    a(f'v_add_f32 v23, v{SR}, v{SR+1}')
    a(f'v_add_f32 v24, v{SR+2}, v{SR+3}')
    for i in range(4, 32, 2):
        a(f'v_add_f32 v23, v23, v{SR+i}')
        a(f'v_add_f32 v24, v24, v{SR+i+1}')
    for i in range(16):
        a(f'v_cvt_pk_bf16_f32 v{PR+i}, v{SR+2*i}, v{SR+2*i+1}')
    a('v_add_f32 v21, v21, v23')
    a('v_add_f32 v21, v21, v24')
    for i in range(8):
        a(f'v_xor_b32 v{8+i}, 0x4000, v{8+i}')
    a('s_setprio 2')


def merge_out(a, grp):
    own = OR + grp * 32
    oth = OR + (1 - grp) * 32
    a('v_mov_b32 v26, v21')
    a('v_mov_b32 v23, v21')
    a('v_permlane32_swap_b32 v26, v23')
    a('v_add_f32 v21, v26, v23')
    for i in range(8):
        a(f'ds_write_b128 v30, v[{oth+4*i}:{oth+4*i+3}] offset:{i*1024}')
    a('ds_write_b64 v31, v[20:21]')
    a('s_waitcnt lgkmcnt(0)')
    a('s_barrier')
    a('v_xor_b32 v23, 0x10000, v30')
    a('v_xor_b32 v24, 0x800, v31')
    for i in range(8):
        a(f'ds_read_b128 v[{TP+4*i}:{TP+4*i+3}], v23 offset:{i*1024}')
    a('ds_read_b64 v[240:241], v24')
    a('s_waitcnt lgkmcnt(0)')
    a('s_barrier')
    a('v_mov_b32 v26, 0xff7fffff')
    a('v_cmp_lt_f32 vcc, 0, v21')
    a('v_cndmask_b32 v20, v26, v20, vcc')
    a('v_cmp_lt_f32 vcc, 0, v241')
    a('v_cndmask_b32 v240, v26, v240, vcc')
    a('v_max_f32 v23, v20, v240')
    a('v_sub_f32 v24, v20, v23')
    a('v_sub_f32 v25, v240, v23')
    a('v_exp_f32 v24, v24')
    a('v_exp_f32 v25, v25')
    a('v_mul_f32 v21, v21, v24')
    a('v_fmac_f32 v21, v241, v25')
    a('v_rcp_f32 v21, v21')
    a('v_mul_f32 v24, v24, v21')
    a('v_mul_f32 v25, v25, v21')
    for i in range(32):
        a(f'v_mul_f32 v{own+i}, v{own+i}, v24')
        a(f'v_fmac_f32 v{own+i}, v{TP+i}, v25')
    for dtl in range(2):
        acc = own + dtl * 16
        t = FP + dtl * 8
        for g in range(4):
            a(f'v_cvt_pk_bf16_f32 v{t+2*g}, v{acc+4*g}, v{acc+4*g+1}')
            a(f'v_cvt_pk_bf16_f32 v{t+2*g+1}, v{acc+4*g+2}, v{acc+4*g+3}')
        for k in (0, 2):
            b = t + 2 * k
            a(f'v_permlane32_swap_b32 v{b}, v{b+2}')
            a(f'v_permlane32_swap_b32 v{b+1}, v{b+3}')
            a(f'ds_write_b128 v{242 + dtl*2 + k//2}, v[{b}:{b+3}]')
    for q in range(4):
        a(f'ds_read_b128 v[{FP+16+4*q}:{FP+16+4*q+3}], v246 offset:{q*1024}')
    for q in range(4):
        a(f's_waitcnt lgkmcnt({3-q})')
        a(f'buffer_store_dwordx4 v[{FP+16+4*q}:{FP+16+4*q+3}], v7, s[56:59], s73 offen')
        if q < 3:
            a(f's_add_u32 s73, s73, {8*LDCH}')


def k3_attn(a):
    name = 'k3_attn_kernel'
    kernel_header(a, name)
    a.reset_counters()
    a('s_cmp_ge_u32 s2, 256')
    a('s_cbranch_scc1 K3_END')
    stamp(a)
    load_kernargs(a)
    a('v_and_b32 v1, 63, v0')
    a('v_lshrrev_b32 v23, 6, v0')
    a('v_readfirstlane_b32 s64, v23')
    a('s_lshr_b32 s65, s64, 2')
    a('s_and_b32 s66, s64, 3')
    a('s_and_b32 s3, s2, 7')
    a('s_lshr_b32 s4, s2, 3')
    a('s_and_b32 s5, s4, 3')
    a('s_lshl_b32 s67, s3, 2')
    a('s_add_u32 s67, s67, s5')
    a('s_lshr_b32 s68, s4, 2')
    a('s_mov_b32 s83, 0x3e0293ee')
    a('s_mov_b32 s84, 0x3e0293ee')
    a('s_mov_b32 s85, 0x3e0293ee')
    a('s_waitcnt lgkmcnt(0)')
    srd(a, 44, P_WS, 16 * MB, WS_Q)
    srd(a, 48, P_WS, 16 * MB, WS_K)
    srd(a, 52, P_WS, 16 * MB, WS_V)
    srd(a, 56, P_WS, CH_BYTES, WS_CH)
    a('v_lshrrev_b32 v23, 4, v1')
    a('v_and_b32 v24, 15, v1')
    a('s_lshl_b32 s72, s66, 12')
    a('v_lshlrev_b32 v25, 8, v23')
    a('v_add_u32 v25, s72, v25')
    for t in range(4):
        a(f'v_add_u32 v26, {4*t}, v23')
        a('v_xor_b32 v26, v24, v26')
        a(f'v_lshl_add_u32 v{2+t}, v26, 4, v25')
    a('v_lshrrev_b32 v26, 2, v24')
    a('v_xor_b32 v26, v26, v23')
    a('v_lshl_add_u32 v6, v26, 6, v25')
    a('v_and_b32 v26, 3, v1')
    a('v_lshl_add_u32 v6, v26, 4, v6')
    a('s_lshl_b32 s72, s65, 16')
    a('v_and_b32 v23, 31, v1')
    a('v_lshlrev_b32 v23, 8, v23')
    a('v_add_u32 v23, s72, v23')
    a('v_lshrrev_b32 v24, 5, v1')
    a('v_and_b32 v25, 15, v1')
    a('v_xor_b32 v25, v24, v25')
    a('v_lshl_add_u32 v27, v25, 4, v23')
    a('v_bfe_u32 v25, v1, 2, 2')
    a('v_lshl_add_u32 v23, v24, 2, v25')
    a('v_lshlrev_b32 v23, 8, v23')
    a('s_add_u32 s72, s72, 32768')
    a('v_add_u32 v23, s72, v23')
    a('v_lshl_add_u32 v23, v25, 6, v23')
    a('v_bfe_u32 v25, v1, 4, 1')
    a('v_lshl_add_u32 v23, v25, 5, v23')
    a('v_and_b32 v25, 3, v1')
    a('v_lshl_add_u32 v28, v25, 3, v23')
    a('v_and_b32 v22, 31, v1')
    a('s_lshl_b32 s72, s66, 5')
    a('s_lshl_b32 s73, s65, 6')
    a('s_sub_i32 s72, s72, s73')
    a('v_add_u32 v22, s72, v22')
    a('v_lshlrev_b32 v23, 2, v24')
    a('v_sub_u32 v22, v22, v23')
    a('v_mov_b32 v29, 0xf149f2ca')
    a('s_lshl_b32 s72, s65, 16')
    a('s_lshl_b32 s73, s66, 13')
    a('s_add_u32 s72, s72, s73')
    a('s_add_u32 s72, s72, 32768')
    a('v_lshlrev_b32 v30, 4, v1')
    a('v_add_u32 v30, s72, v30')
    a('s_lshl_b32 s72, s64, 9')
    a('s_add_u32 s72, s72, 131072')
    a('v_lshlrev_b32 v31, 3, v1')
    a('v_add_u32 v31, s72, v31')
    a('v_lshrrev_b32 v25, 3, v1')
    a('v_and_b32 v26, 7, v1')
    a(f's_mov_b32 s72, {LDCH}')
    a('v_mul_lo_u32 v7, v25, s72')
    a('v_lshl_add_u32 v7, v26, 4, v7')
    a('s_lshl_b32 s72, s65, 16')
    a('s_lshl_b32 s73, s66, 13')
    a('s_add_u32 s72, s72, s73')
    a('s_add_u32 s72, s72, 32768')
    a('v_xor_b32 v23, v25, v26')
    a('v_lshlrev_b32 v25, 7, v25')
    a('v_lshl_add_u32 v246, v23, 4, v25')
    a('v_add_u32 v246, s72, v246')
    a('v_and_b32 v23, 31, v1')
    a('v_xor_b32 v26, v24, v26')
    a('v_lshlrev_b32 v25, 7, v23')
    a('v_lshl_add_u32 v242, v26, 4, v25')
    a('v_add_u32 v242, s72, v242')
    for c in range(1, 4):
        a(f'v_xor_b32 v{242+c}, {32*c}, v242')
    a('v_lshlrev_b32 v255, 8, v23')
    a('v_lshl_add_u32 v255, v24, 4, v255')
    a('s_sub_u32 s69, 15, s68')
    a('s_mov_b32 s82, 0')

    def qloads(qreg):
        a('s_lshl_b32 s72, s67, 19')
        a(f's_lshl_b32 s73, s{qreg}, 15')
        a('s_add_u32 s72, s72, s73')
        a('s_lshl_b32 s73, s66, 13')
        a('s_add_u32 s72, s72, s73')
        for ds in range(8):
            a(f'buffer_load_dwordx4 v[{QF+4*ds}:{QF+4*ds+3}], v255, s[44:47], s72 offen offset:{ds*32}')
    a('s_lshl_b32 s75, s67, 19')
    a('s_lshl_b32 s72, s65, 14')
    a('s_add_u32 s75, s75, s72')
    a('s_sub_u32 s71, s75, 32768')
    a('s_lshl_b32 s80, s65, 16')
    a('s_lshl_b32 s72, s66, 12')
    a('s_add_u32 s80, s80, s72')
    a('s_add_u32 s81, s80, 32768')
    dma_k(a)
    qloads(69)
    for ds in range(8):
        a(f'v_xor_b32 v{8+ds}, {ds*32}, v27')
    for dt in range(4):
        a(f'v_xor_b32 v{16+dt}, {dt*64}, v28')
    a('s_mov_b32 s74, s75')
    a.label('K3_PASS')
    a('s_mov_b32 s71, s75')
    a('v_mov_b32 v20, 0')
    a('v_mov_b32 v21, 0')
    for i in range(16):
        a(f'v_mov_b32 v{CB+i}, 0')
    for i in range(64):
        a(f'v_mov_b32 v{OR+i}, 0')
    a('s_mov_b32 s70, 0')
    a('s_cmp_eq_u32 s65, 1')
    a('s_cbranch_scc0 K3_NOSTAG')
    a('s_barrier')
    a.label('K3_NOSTAG')
    a('s_cmp_eq_u32 s82, 0')
    a('s_cbranch_scc1 K3_W0')
    a('s_waitcnt vmcnt(4)')
    a('s_branch K3_W1')
    a.label('K3_W0')
    a('s_waitcnt vmcnt(0)')
    a.label('K3_W1')
    a('s_barrier')
    if PROF:
        a('s_cmp_eq_u32 s82, 0')
        a('s_cbranch_scc0 K3_PS1')
        stamp(a)
        a.label('K3_PS1')
    dma_pre(a)
    m_phase(a, True, False, dma_fill(a))
    a('s_barrier')
    a.label('K3_LOOP')
    cstamp(a)
    v_phase(a)
    a('s_waitcnt vmcnt(0)')
    a('s_barrier')
    a('s_cmp_eq_u32 s70, s69')
    a('s_cbranch_scc1 K3_FINAL')
    a('s_add_u32 s70, s70, 1')
    dma_pre(a)
    m_phase(a, True, True, dma_fill(a))
    for dt in range(4):
        a(f'v_xor_b32 v{16+dt}, 0x4000, v{16+dt}')
    a('s_barrier')
    if PROF:
        a('s_sub_u32 s70, s70, 1')
        cstamp(a)
        a('s_add_u32 s70, s70, 1')
    a('s_branch K3_LOOP')
    a.label('K3_FINAL')
    a('s_cmp_eq_u32 s82, 0')
    a('s_cbranch_scc0 K3_NOQ')
    qloads(68)
    a.label('K3_NOQ')
    m_phase(a, False, True)
    for dt in range(4):
        a(f'v_xor_b32 v{16+dt}, 0x4000, v{16+dt}')
    a('s_barrier')
    a('s_cmp_eq_u32 s65, 0')
    a('s_cbranch_scc0 K3_NOSTAG2')
    a('s_barrier')
    a.label('K3_NOSTAG2')
    a('s_nop 15')
    a('s_lshl_b32 s72, s69, 7')
    a('s_lshl_b32 s73, s66, 5')
    a('s_add_u32 s72, s72, s73')
    a(f's_mul_i32 s73, s72, {LDCH}')
    a('s_lshl_b32 s72, s67, 8')
    a('s_add_u32 s73, s73, s72')
    a('s_lshl_b32 s72, s65, 7')
    a('s_add_u32 s73, s73, s72')
    a('s_cmp_eq_u32 s65, 1')
    a('s_cbranch_scc1 K3_MERGE1')
    merge_out(a, 0)
    a('s_branch K3_MERGED')
    a.label('K3_MERGE1')
    merge_out(a, 1)
    a.label('K3_MERGED')
    a('s_nop 7')
    a('s_cmp_eq_u32 s82, 1')
    a('s_cbranch_scc1 K3_PEND')
    stamp(a)
    a('s_mov_b32 s82, 1')
    a('s_mov_b32 s69, s68')
    a('s_mov_b32 s74, 0x7ff00000')
    a('s_branch K3_PASS')
    a.label('K3_PEND')
    stamp(a)
    stamp_dump(a, 64)
    a.label('K3_END')
    a('s_endpgm')
    return name, kernel_desc(name, 256)
```

```python
import sys, os
sys.path.insert(0, os.path.dirname(__file__))
from asmlib import Asm

NAME = 'parallel_sum__compressed_kv_cla__dense_activation_squared_relu__prompt'

MB = 1 << 20
WS_XN = 0
WS_Q = 16 * MB
WS_K = 32 * MB
WS_V = 48 * MB
WS_CH = 64 * MB
WS_PART = 96 * MB
LDCH = 5888 * 2
CH_BYTES = 2048 * LDCH
NSPLIT = 8

P_X, P_CKV, P_WQ, P_WUK, P_WUV, P_WO, P_BX, P_W1 = 16, 18, 20, 22, 24, 26, 28, 30
P_B1, P_W2, P_B2, P_OUT, P_DBG, P_WS = 32, 34, 36, 38, 40, 42


def load_kernargs(a):
    a('s_load_dwordx16 s[16:31], s[0:1], 0')
    a('s_load_dwordx8 s[32:39], s[0:1], 64')
    a('s_load_dwordx4 s[40:43], s[0:1], 96')


def srd(a, d, ptr, nbytes, off=0):
    if off:
        a(f's_add_u32 s{d}, s{ptr}, 0x{off:x}')
        a(f's_addc_u32 s{d+1}, s{ptr+1}, 0')
        a(f's_and_b32 s{d+1}, s{d+1}, 0xffff')
    else:
        a(f's_mov_b32 s{d}, s{ptr}')
        a(f's_and_b32 s{d+1}, s{ptr+1}, 0xffff')
    a(f's_mov_b32 s{d+2}, 0x{nbytes:x}')
    a(f's_mov_b32 s{d+3}, 0x20000')


def csel(a, dst, x, y):
    a(f's_mov_b32 s101, {y}')
    a(f's_cselect_b32 {dst}, {x}, s101')


PROF = os.environ.get('PROF', '0') == '1'
NSTAMP = [0]


def stamp(a):
    if not PROF:
        return
    i = NSTAMP[0]
    NSTAMP[0] += 1
    assert i < 6
    a(f's_memtime s[{86+2*i}:{87+2*i}]')


def stamp_dump(a, wave_sgpr):
    if not PROF:
        return
    n = NSTAMP[0]
    NSTAMP[0] = 0
    a('s_memrealtime s[98:99]')
    a('s_waitcnt lgkmcnt(0) vmcnt(0)')
    a(f's_and_b32 s100, s{wave_sgpr}, 3')
    a('s_cmp_eq_u32 s100, 0')
    lab = f'PD{id(a)}_{len(a.lines)}'
    a(f's_cbranch_scc0 {lab}')
    a('s_and_b32 s100, s2, 63')
    a('s_cmp_eq_u32 s100, 0')
    a(f's_cbranch_scc0 {lab}')
    srd(a, 60, P_DBG, 256)
    a('s_lshr_b32 s100, s2, 6')
    a('s_lshl_b32 s100, s100, 6')
    a(f's_lshl_b32 s101, s{wave_sgpr}, 3')
    a('s_add_u32 s100, s100, s101')
    a('v_mov_b32 v1, 0')
    for i in range(n):
        a(f'v_mov_b32 v2, s{86+2*i}')
        a(f'buffer_store_dword v2, v1, s[60:63], s100 offen offset:{4*i}')
    a('v_mov_b32 v2, s98')
    a(f'buffer_store_dword v2, v1, s[60:63], s100 offen offset:28')
    a.label(lab)


def kernel_header(a, name):
    a.raw(f'.text\n.globl {name}\n.p2align 8\n.type {name},@function\n{name}:')


def kernel_desc(name, vgpr, sgpr=102):
    acc = (vgpr + 3) // 4 * 4
    return f'''.section .rodata,"a"
.p2align 6
.amdhsa_kernel {name}
  .amdhsa_next_free_vgpr {vgpr}
  .amdhsa_next_free_sgpr {sgpr}
  .amdhsa_accum_offset {acc}
  .amdhsa_group_segment_fixed_size 0
  .amdhsa_kernarg_size 112
  .amdhsa_user_sgpr_count 2
  .amdhsa_user_sgpr_kernarg_segment_ptr 1
  .amdhsa_system_sgpr_workgroup_id_x 1
.end_amdhsa_kernel
'''


def w_voffsets(a, TN, sld, vd):
    if TN == 256:
        a('v_lshrrev_b32 v14, 5, v1')
        a('s_lshl_b32 s72, s64, 2')
        a('v_add_u32 v15, s72, v14')
        a(f'v_mul_lo_u32 v15, v15, s{sld}')
        a('v_bfe_u32 v16, v1, 2, 3')
        a('v_and_b32 v17, 3, v1')
        a('v_xor_b32 v18, v16, v14')
        a('v_lshlrev_b32 v18, 6, v18')
        a('v_lshl_add_u32 v18, v17, 4, v18')
        a(f'v_add_u32 v{vd}, v15, v18')
        a('v_xor_b32 v18, 2, v14')
        a('v_xor_b32 v18, v16, v18')
        a('v_lshlrev_b32 v18, 6, v18')
        a('v_lshl_add_u32 v18, v17, 4, v18')
        a(f'v_add_u32 v{vd+1}, v15, v18')
        a(f's_lshl_b32 s72, s{sld}, 1')
        a(f'v_add_u32 v{vd+1}, s72, v{vd+1}')
    else:
        a('v_lshrrev_b32 v14, 4, v1')
        a('s_lshl_b32 s72, s64, 2')
        a('v_add_u32 v15, s72, v14')
        a(f'v_mul_lo_u32 v15, v15, s{sld}')
        a('v_bfe_u32 v16, v1, 2, 2')
        a('v_and_b32 v17, 3, v1')
        a('v_xor_b32 v18, v16, v14')
        a('v_lshlrev_b32 v18, 6, v18')
        a('v_lshl_add_u32 v18, v17, 4, v18')
        a(f'v_add_u32 v{vd}, v15, v18')
        a(f'v_mov_b32 v{vd+1}, v{vd}')


def gemm_setup(a, TN, lda):
    WN = TN // 64
    WM = 8 // WN
    JM = (256 // WM) // 32
    SS = 16384 + TN * 64
    a('v_and_b32 v1, 63, v0')
    a('v_lshrrev_b32 v14, 6, v0')
    a('v_readfirstlane_b32 s64, v14')
    a(f's_and_b32 s69, s64, {WN-1}')
    a(f's_lshr_b32 s70, s64, {WN.bit_length()-1}')
    a('v_lshrrev_b32 v14, 2, v1')
    a('v_lshlrev_b32 v15, 5, v0')
    a('s_lshl_b32 s72, s64, 5')
    a('v_add_u32 v14, s72, v14')
    a(f's_mov_b32 s73, {lda}')
    a('v_mul_lo_u32 v14, v14, s73')
    a('v_lshrrev_b32 v15, 4, v1')
    a('v_and_b32 v16, 3, v1')
    a('v_xor_b32 v15, v15, v16')
    a('v_lshl_add_u32 v2, v15, 4, v14')
    a(f'v_add_u32 v3, {16*lda}, v2')
    w_voffsets(a, TN, 67, 4)
    a('v_and_b32 v14, 31, v1')
    a(f's_mul_i32 s72, s70, {(256//WM)*64}')
    a('v_lshlrev_b32 v14, 6, v14')
    a('v_add_u32 v14, s72, v14')
    a('v_lshrrev_b32 v15, 5, v1')
    a('v_bfe_u32 v16, v1, 2, 2')
    a('v_xor_b32 v15, v15, v16')
    a('v_lshl_add_u32 v6, v15, 4, v14')
    a('v_xor_b32 v7, 32, v6')
    a(f'v_add_u32 v8, {2*SS}, v6')
    a(f'v_add_u32 v9, {2*SS}, v7')
    RS = TN * 2
    a('v_lshrrev_b32 v14, 5, v1')
    a('v_lshlrev_b32 v14, 3, v14')
    a('v_bfe_u32 v15, v1, 2, 2')
    a('v_add_u32 v14, v14, v15')
    a(f'v_mul_u32_u24 v14, {RS}, v14')
    a('s_lshl_b32 s72, s69, 1')
    a('v_xor_b32 v15, s72, v15')
    a('v_lshl_add_u32 v14, v15, 6, v14')
    a('v_bfe_u32 v15, v1, 4, 1')
    a('v_lshl_add_u32 v14, v15, 5, v14')
    a('v_and_b32 v15, 3, v1')
    a('v_lshl_add_u32 v14, v15, 3, v14')
    a('v_add_u32 v10, 16384, v14')
    a('v_xor_b32 v11, 64, v10')
    a(f'v_add_u32 v12, {2*SS}, v10')
    a(f'v_add_u32 v13, {2*SS}, v11')
    a('s_lshl_b32 s71, s64, 11')
    if TN == 256:
        a('s_mov_b32 s74, s71')
    else:
        a('s_lshl_b32 s74, s64, 10')


PA = dict(act=44, w=48, s_act=65, s_w=66, s_wstep=68, vw=4)


def gemm_main(a, TN, tiles, pre_loop_hook=None):
    WN = TN // 64
    WM = 8 // WN
    JM = (256 // WM) // 32
    SS = 16384 + TN * 64
    RS = TN * 2
    stages = []
    for ti, t in enumerate(tiles):
        for k in range(t['nst']):
            stages.append((ti, k))
    nst = len(stages)

    def dma_list(s):
        ti, k = stages[s]
        P = tiles[ti]['params']
        hook = tiles[ti].get('w_stage_hook')
        buf = s % 4
        base = buf * SS
        L = []
        for t in range(2):
            def f(t=t):
                a(f's_add_u32 m0, s71, {base + t*1024}')
                a(f'buffer_load_dwordx4 v{2+t}, s[{P["act"]}:{P["act"]+3}], s{P["s_act"]} offen lds', tag=('st', s))
                if t == 1:
                    a(f's_add_u32 s{P["s_act"]}, s{P["s_act"]}, 64')
            L.append(f)
        nw = 2 if TN == 256 else 1
        for t in range(nw):
            def f(t=t):
                if t == 0 and hook:
                    hook(k)
                a(f's_add_u32 m0, s74, {base + 16384 + t*1024}')
                a(f'buffer_load_dwordx4 v{P["vw"]+t}, s[{P["w"]}:{P["w"]+3}], s{P["s_w"]} offen lds', tag=('st', s))
                if t == nw - 1:
                    a(f's_add_u32 s{P["s_w"]}, s{P["s_w"]}, s{P["s_wstep"]}')
            L.append(f)
        return L

    def read_list(s, ks, b):
        buf = s % 4
        win = buf // 2
        so = (buf % 2) * SS
        L = []
        for i in range(2):
            for j in range(2):
                r = 32 + b * 8 + i * 4 + j * 2
                L.append(lambda r=r, i=i, j=j: a(f'ds_read_b64_tr_b16 v[{r}:{r+1}], v{10 + win*2 + i} offset:{so + (16*ks + 4*j)*RS}', tag=('fr', s, ks)))
        for jm in range(JM):
            r = 48 + b * 16 + jm * 4
            L.append(lambda r=r, jm=jm: a(f'ds_read_b128 v[{r}:{r+3}], v{6 + win*2 + ks} offset:{so + jm*2048}', tag=('fr', s, ks)))
        return L

    def mfmas(b, first, fill):
        n = 2 * JM
        per = (len(fill) + n - 1) // n if fill else 0
        k = 0
        for i in range(2):
            for jm in range(JM):
                acc = 128 + (i * JM + jm) * 16
                c = '0' if first else f'v[{acc}:{acc+15}]'
                a(f'v_mfma_f32_32x32x16_bf16 v[{acc}:{acc+15}], v[{32+b*8+i*4}:{32+b*8+i*4+3}], v[{48+b*16+jm*4}:{48+b*16+jm*4+3}], {c}')
                for _ in range(per):
                    if k < len(fill):
                        fill[k]()
                        k += 1
        while k < len(fill):
            fill[k]()
            k += 1

    for s in range(min(3, nst)):
        for f in dma_list(s):
            f()
    if pre_loop_hook:
        pre_loop_hook()
    a.wait_vm(('st', 0))
    a('s_barrier')
    stamp(a)
    for f in read_list(0, 0, 0):
        f()
    for s in range(nst):
        ti, k = stages[s]
        a.wait_lg(('fr', s, 0))
        xf = tiles[ti]['extra'](k) if tiles[ti].get('extra') else []
        mfmas(0, k == 0, read_list(s, 1, 1) + xf)
        fill = []
        if s + 1 < nst:
            a.wait_vm(('st', s + 1))
            a('s_barrier')
            fill = read_list(s + 1, 0, 0)
            if s + 3 < nst:
                fill = fill + dma_list(s + 3)
        a.wait_lg(('fr', s, 1))
        mfmas(1, False, fill)
        if ti == 1 and k == 7:
            stamp(a)
        if k == tiles[ti]['nst'] - 1:
            stamp(a)
            if tiles[ti].get('mid_hook'):
                tiles[ti]['mid_hook']()


def epi_bf16_store(a, JM, sbase, rowstep, vofs, src_of):
    pass


def epilogue_qkv(a, JM=4, scale=False):
    if scale:
        a('s_mov_b32 s77, 0x3e0293ee')
        for i in range(JM * 32):
            a(f'v_mul_f32 v{128+i}, s77, v{128+i}')
    a('v_and_b32 v14, 31, v1')
    a('v_lshlrev_b32 v14, 8, v14')
    a('v_lshrrev_b32 v15, 5, v1')
    a('v_lshl_add_u32 v14, v15, 4, v14')
    n = 0
    for jm in range(JM):
        a(f's_add_u32 s76, s75, {jm*32*256}')
        for i in range(2):
            acc = 128 + (i * JM + jm) * 16
            t = 80 + (n % 4) * 8
            n += 1
            for g in range(4):
                a(f'v_cvt_pk_bf16_f32 v{t+2*g}, v{acc+4*g}, v{acc+4*g+1}')
                a(f'v_cvt_pk_bf16_f32 v{t+2*g+1}, v{acc+4*g+2}, v{acc+4*g+3}')
            for k in (0, 2):
                b = t + 2 * k
                a(f'v_permlane32_swap_b32 v{b}, v{b+2}')
                a(f'v_permlane32_swap_b32 v{b+1}, v{b+3}')
                a(f'buffer_store_dwordx4 v[{b}:{b+3}], v14, s[52:55], s76 offen offset:{i*64 + k*16}')


def xp_setup(a, lds_base, rs, vw=22, vr=26, vs=14):
    a('s_lshl_b32 s72, s64, 12')
    a(f's_add_u32 s72, s72, {lds_base}')
    a('v_and_b32 v15, 31, v1')
    a('v_lshrrev_b32 v16, 5, v1')
    a('v_and_b32 v17, 7, v1')
    a('v_xor_b32 v16, v16, v17')
    a('v_lshlrev_b32 v15, 7, v15')
    a(f'v_lshl_add_u32 v{vw}, v16, 4, v15')
    a(f'v_add_u32 v{vw}, s72, v{vw}')
    for c in range(1, 4):
        a(f'v_xor_b32 v{vw+c}, {32*c}, v{vw}')
    a('v_lshrrev_b32 v15, 3, v1')
    a('v_xor_b32 v16, v15, v17')
    a('v_lshlrev_b32 v18, 7, v15')
    a(f'v_lshl_add_u32 v{vr}, v16, 4, v18')
    a(f'v_add_u32 v{vr}, s72, v{vr}')
    a(f's_mov_b32 s72, {rs}')
    a(f'v_mul_lo_u32 v{vs}, v15, s72')
    a(f'v_lshl_add_u32 v{vs}, v17, 4, v{vs}')


def xp_epilogue(a, JM, rs, pack, defer=False, srd_=52, vw=22, vr=26, vs=14):
    later = []
    pend = []

    def mk(b, jm, q):
        def f():
            a(f's_add_u32 s76, s75, {(jm*32 + q*8)*rs}')
            a(f'buffer_store_dwordx4 v[{b}:{b+3}], v{vs}, s[{srd_}:{srd_+3}], s76 offen')
        return f

    for jm in range(JM):
        for i in range(2):
            t = pack(i, jm)
            for k in (0, 2):
                b = t + 2 * k
                a(f'v_permlane32_swap_b32 v{b}, v{b+2}')
                a(f'v_permlane32_swap_b32 v{b+1}, v{b+3}')
                a(f'ds_write_b128 v{vw + i*2 + k//2}, v[{b}:{b+3}]', tag=('xw', jm))
        cur = []
        for q in range(4):
            if jm == 0:
                b = 128 + (q // 2) * JM * 16 + 8 + (q % 2) * 4
            else:
                b = 80 + (jm - 1) * 16 + q * 4
            a(f'ds_read_b128 v[{b}:{b+3}], v{vr} offset:{q*1024}', tag=('xr', jm))
            cur.append(mk(b, jm, q))
        if pend:
            a.wait_lg(('xr', jm - 1))
            for f in pend:
                f()
            pend = []
        if defer and jm >= 1:
            later.extend(cur)
        else:
            pend = cur
    a.wait_lg(('xr', JM - 1))
    for f in pend:
        f()
    return later


def pack_plain(a, JM):
    def pack(i, jm):
        acc = 128 + (i * JM + jm) * 16
        for g in range(4):
            a(f'v_cvt_pk_bf16_f32 v{acc+2*g}, v{acc+4*g}, v{acc+4*g+1}')
            a(f'v_cvt_pk_bf16_f32 v{acc+2*g+1}, v{acc+4*g+2}, v{acc+4*g+3}')
        return acc
    return pack


def epilogue_ffn2(a, JM=4):
    a('v_lshrrev_b32 v15, 5, v1')
    a('v_lshlrev_b32 v16, 3, v15')
    for i in range(2):
        for g in range(4):
            r = 64 + (i * 4 + g) * 2
            a(f'buffer_load_dwordx2 v[{r}:{r+1}], v16, s[56:59], s77 offen offset:{i*64 + g*16}', tag='bias')
    xp_setup(a, 131072, LDCH)
    a.wait_vm('bias')
    for i in range(2):
        for g in range(4):
            r = 64 + (i * 4 + g) * 2
            o = 32 + (i * 4 + g) * 4
            a(f'v_lshlrev_b32 v{o}, 16, v{r}')
            a(f'v_and_b32 v{o+1}, 0xffff0000, v{r}')
            a(f'v_lshlrev_b32 v{o+2}, 16, v{r+1}')
            a(f'v_and_b32 v{o+3}, 0xffff0000, v{r+1}')

    def pack(i, jm):
        acc = 128 + (i * JM + jm) * 16
        for g in range(4):
            for h in range(2):
                r0 = acc + 4 * g + 2 * h
                bo = 32 + (i * 4 + g) * 4 + 2 * h
                d = acc + 2 * g + h
                x = 27 + 2 * h
                a(f'v_cvt_pk_bf16_f32 v{x}, v{r0}, v{r0+1}')
                a(f'v_and_b32 v{x+1}, 0xffff0000, v{x}')
                a(f'v_lshlrev_b32 v{x}, 16, v{x}')
                a(f'v_add_f32 v{x}, v{x}, v{bo}')
                a(f'v_add_f32 v{x+1}, v{x+1}, v{bo+1}')
                a(f'v_cvt_pk_bf16_f32 v{x}, v{x}, v{x+1}')
                a(f'v_and_b32 v{x+1}, 0xffff0000, v{x}')
                a(f'v_lshlrev_b32 v{x}, 16, v{x}')
                a(f'v_max_f32 v{x}, 0, v{x}')
                a(f'v_max_f32 v{x+1}, 0, v{x+1}')
                a(f'v_mul_f32 v{x}, v{x}, v{x}')
                a(f'v_mul_f32 v{x+1}, v{x+1}, v{x+1}')
                a(f'v_cvt_pk_bf16_f32 v{d}, v{x}, v{x+1}')
        return acc
    xp_epilogue(a, JM, LDCH, pack)


def epilogue_ffn(a, JM=4):
    a('v_lshrrev_b32 v15, 5, v1')
    a('v_lshlrev_b32 v16, 3, v15')
    for i in range(2):
        for g in range(4):
            r = 16 + 0
    for i in range(2):
        for g in range(4):
            r = 96 + (i * 4 + g) * 2
            a(f'buffer_load_dwordx2 v[{r}:{r+1}], v16, s[56:59], s77 offen offset:{i*64 + g*16}', tag='bias')
    a('v_and_b32 v14, 31, v1')
    a(f's_mov_b32 s76, {LDCH}')
    a('v_mul_lo_u32 v14, v14, s76')
    a('v_lshl_add_u32 v14, v15, 4, v14')
    a.wait_vm('bias')
    for i in range(2):
        for g in range(4):
            r = 96 + (i * 4 + g) * 2
            o = 32 + (i * 4 + g) * 4
            a(f'v_lshlrev_b32 v{o}, 16, v{r}')
            a(f'v_and_b32 v{o+1}, 0xffff0000, v{r}')
            a(f'v_lshlrev_b32 v{o+2}, 16, v{r+1}')
            a(f'v_and_b32 v{o+3}, 0xffff0000, v{r+1}')
    n = 0
    for jm in range(JM):
        a(f's_add_u32 s76, s75, {jm*32*LDCH}')
        for i in range(2):
            acc = 128 + (i * JM + jm) * 16
            t = 80 + (n % 2) * 8
            n += 1
            for g in range(4):
                for h in range(2):
                    r0 = acc + 4 * g + 2 * h
                    bo = 32 + (i * 4 + g) * 4 + 2 * h
                    d = t + 2 * g + h
                    a(f'v_cvt_pk_bf16_f32 v112, v{r0}, v{r0+1}')
                    a(f'v_lshlrev_b32 v113, 16, v112')
                    a(f'v_and_b32 v114, 0xffff0000, v112')
                    a(f'v_add_f32 v113, v113, v{bo}')
                    a(f'v_add_f32 v114, v114, v{bo+1}')
                    a(f'v_cvt_pk_bf16_f32 v112, v113, v114')
                    a(f'v_lshlrev_b32 v113, 16, v112')
                    a(f'v_and_b32 v114, 0xffff0000, v112')
                    a(f'v_max_f32 v113, 0, v113')
                    a(f'v_max_f32 v114, 0, v114')
                    a(f'v_mul_f32 v113, v113, v113')
                    a(f'v_mul_f32 v114, v114, v114')
                    a(f'v_cvt_pk_bf16_f32 v{d}, v113, v114')
            for k in (0, 2):
                b = t + 2 * k
                a(f'v_permlane32_swap_b32 v{b}, v{b+2}')
                a(f'v_permlane32_swap_b32 v{b+1}, v{b+3}')
                a(f'buffer_store_dwordx4 v[{b}:{b+3}], v14, s[52:55], s76 offen offset:{i*64 + k*16}')


def epilogue_part(a, JM=2):
    a('v_and_b32 v14, 31, v1')
    a('v_lshlrev_b32 v14, 10, v14')
    a('v_lshrrev_b32 v15, 5, v1')
    a('v_lshl_add_u32 v14, v15, 4, v14')
    n = 0
    for jm in range(JM):
        a(f's_add_u32 s76, s75, {jm*32*1024}')
        for i in range(2):
            acc = 128 + (i * JM + jm) * 16
            t = 80 + (n % 4) * 8
            n += 1
            for g in range(4):
                a(f'v_cvt_pk_bf16_f32 v{t+2*g}, v{acc+4*g}, v{acc+4*g+1}')
                a(f'v_cvt_pk_bf16_f32 v{t+2*g+1}, v{acc+4*g+2}, v{acc+4*g+3}')
            for k in (0, 2):
                b = t + 2 * k
                a(f'v_permlane32_swap_b32 v{b}, v{b+2}')
                a(f'v_permlane32_swap_b32 v{b+1}, v{b+3}')
                a(f'buffer_store_dwordx4 v[{b}:{b+3}], v14, s[52:55], s76 offen offset:{i*64 + k*16}')


def wave_allreduce_add(a, v, t):
    for off in (0x041F, 0x081F, 0x101F, 0x201F, 0x401F):
        a(f'ds_swizzle_b32 v{t}, v{v} offset:0x{off:04X}')
        a('s_waitcnt lgkmcnt(0)')
        a(f'v_add_f32 v{v}, v{v}, v{t}')
    a(f'v_mov_b32 v{t}, v{v}')
    a(f'v_mov_b32 v{t+1}, v{v}')
    a(f'v_permlane32_swap_b32 v{t}, v{t+1}')
    a(f'v_add_f32 v{v}, v{t}, v{t+1}')


def bf16_round(a, v, t):
    a(f'v_cvt_pk_bf16_f32 v{t}, v{v}, v{v}')
    a(f'v_lshlrev_b32 v{v}, 16, v{t}')


def layernorm_row(a):
    for i in range(4):
        a(f'v_lshlrev_b32 v{84+2*i}, 16, v{80+i}')
        a(f'v_and_b32 v{85+2*i}, 0xffff0000, v{80+i}')
    a('v_add_f32 v92, v84, v85')
    for i in range(2, 8):
        a(f'v_add_f32 v92, v92, v{84+i}')
    wave_allreduce_add(a, 92, 93)
    a('v_mul_f32 v92, 0x3b000000, v92')
    a('v_mov_b32 v95, 0')
    for i in range(8):
        a(f'v_sub_f32 v93, v{84+i}, v92')
        a('v_fmac_f32 v95, v93, v93')
    wave_allreduce_add(a, 95, 93)
    a('v_mul_f32 v95, 0x3b000000, v95')
    bf16_round(a, 92, 93)
    bf16_round(a, 95, 93)
    a('v_add_f32 v95, 0x3727c5ac, v95')
    bf16_round(a, 95, 93)
    a('v_sqrt_f32 v95, v95')
    bf16_round(a, 95, 93)
    a('v_rcp_f32 v95, v95')
    for i in range(8):
        a(f'v_sub_f32 v{84+i}, v{84+i}, v92')
    for i in range(4):
        a(f'v_cvt_pk_bf16_f32 v{80+i}, v{84+2*i}, v{85+2*i}')
    for i in range(4):
        a(f'v_lshlrev_b32 v{84+2*i}, 16, v{80+i}')
        a(f'v_and_b32 v{85+2*i}, 0xffff0000, v{80+i}')
    for i in range(8):
        a(f'v_mul_f32 v{84+i}, v{84+i}, v95')
    for i in range(4):
        a(f'v_cvt_pk_bf16_f32 v{80+i}, v{84+2*i}, v{85+2*i}')
    a('buffer_store_dwordx4 v[80:83], v19, s[60:63], 0 offen', tag='lnst')


def k0_ln(a):
    name = 'k0_ln_kernel'
    kernel_header(a, name)
    a.reset_counters()
    a('s_cmp_ge_u32 s2, 512')
    a('s_cbranch_scc1 K0_END')
    load_kernargs(a)
    a('v_and_b32 v1, 63, v0')
    a('v_lshrrev_b32 v2, 6, v0')
    a('s_lshl_b32 s3, s2, 2')
    a('v_add_u32 v2, s3, v2')
    a('v_lshlrev_b32 v2, 10, v2')
    a('v_lshl_add_u32 v19, v1, 4, v2')
    a('s_waitcnt lgkmcnt(0)')
    srd(a, 56, P_X, 2048 * 1024)
    srd(a, 60, P_WS, 2048 * 1024, WS_XN)
    a('buffer_load_dwordx4 v[80:83], v19, s[56:59], 0 offen', tag='lnld')
    a.wait_vm('lnld')
    layernorm_row(a)
    a.label('K0_END')
    a('s_endpgm')
    return name, kernel_desc(name, 96)


def k12_proj(a):
    name = 'k12_proj_kernel'
    kernel_header(a, name)
    a.reset_counters()
    a('s_cmp_ge_u32 s2, 256')
    a('s_cbranch_scc1 K1_END')
    stamp(a)
    load_kernargs(a)
    a('s_and_b32 s3, s2, 7')
    a('s_lshr_b32 s4, s2, 3')
    a('s_and_b32 s5, s4, 3')
    a('s_lshl_b32 s3, s3, 2')
    a('s_add_u32 s3, s3, s5')
    a('s_lshr_b32 s4, s4, 2')
    a('s_and_b32 s60, s2, 7')
    a('s_lshr_b32 s61, s2, 3')
    a('s_mul_i32 s60, s60, 23')
    a('s_add_u32 s60, s60, s61')
    a('s_and_b32 s61, s60, 7')
    a('s_lshr_b32 s60, s60, 3')
    a('s_waitcnt lgkmcnt(0)')
    srd(a, 44, P_CKV, 2048 * 1024)
    a('s_cmp_lt_u32 s3, 16')
    a(f's_cselect_b32 s48, s{P_WUK}, s{P_WUV}')
    a(f's_cselect_b32 s49, s{P_WUK+1}, s{P_WUV+1}')
    csel(a, 's5', f'0x{WS_K:x}', f'0x{WS_V:x}')
    a('s_and_b32 s49, s49, 0xffff')
    a(f's_mov_b32 s50, 0x{512*8192:x}')
    a('s_mov_b32 s51, 0x20000')
    a(f's_add_u32 s52, s{P_WS}, s5')
    a(f's_addc_u32 s53, s{P_WS+1}, 0')
    a('s_and_b32 s53, s53, 0xffff')
    a(f's_mov_b32 s54, 0x{16*MB:x}')
    a('s_mov_b32 s55, 0x20000')
    a('s_and_b32 s3, s3, 15')
    a('s_lshl_b32 s65, s4, 18')
    a('s_lshl_b32 s66, s3, 9')
    a('s_mov_b32 s67, 8192')
    a(f's_mov_b32 s68, {32*8192}')
    srd(a, 8, P_WS, 2048 * 1024, WS_XN)
    a('s_cmp_lt_u32 s60, 16')
    a(f's_cselect_b32 s12, s{P_WQ}, s{P_W1}')
    a(f's_cselect_b32 s13, s{P_WQ+1}, s{P_W1+1}')
    csel(a, 's14', f'0x{512*8192:x}', f'0x{512*3584:x}')
    csel(a, 's62', '8192', '3584')
    csel(a, 's63', f'{32*8192}', f'{32*3584}')
    csel(a, 's6', '0', '1')
    a('s_mov_b32 s15, 0x20000')
    a('s_and_b32 s13, s13, 0xffff')
    a('s_cmp_lt_u32 s2, 184')
    a('s_cselect_b32 s10, s10, 0')
    a('s_cselect_b32 s14, s14, 0')
    a('s_and_b32 s60, s60, 15')
    a('s_lshl_b32 s78, s61, 18')
    a('s_lshl_b32 s79, s60, 9')
    srd(a, 56, P_B1, 1792 * 2)
    gemm_setup(a, 256, 1024)
    w_voffsets(a, 256, 62, 20)
    PB = dict(act=8, w=12, s_act=78, s_w=79, s_wstep=63, vw=20)

    def qkv_offsets(sn, sm):
        a(f's_lshl_b32 s72, s{sn}, 8')
        a('s_lshl_b32 s73, s69, 6')
        a('s_add_u32 s72, s72, s73')
        a('s_lshr_b32 s73, s72, 7')
        a('s_lshl_b32 s75, s73, 19')
        a('s_and_b32 s73, s72, 127')
        a('s_lshl_b32 s73, s73, 1')
        a('s_add_u32 s75, s75, s73')
        a(f's_lshl_b32 s73, s{sm}, 16')
        a('s_add_u32 s75, s75, s73')
        a('s_lshl_b32 s73, s70, 15')
        a('s_add_u32 s75, s75, s73')

    later = []

    def epi_a():
        qkv_offsets(3, 4)
        xp_setup(a, 131072, 256)
        later.extend(xp_epilogue(a, 4, 256, pack_plain(a, 4), defer=True))
        a('s_cmp_ge_u32 s2, 184')
        a('s_cbranch_scc1 K1_TAILA')

    def extra(k):
        return [later[k]] if k < len(later) else []

    gemm_main(a, 256, [dict(nst=16, params=PA, mid_hook=epi_a), dict(nst=16, params=PB, extra=extra)])
    a('s_cmp_eq_u32 s6, 1')
    csel(a, 's5', f'0x{WS_CH:x}', f'0x{WS_Q:x}')
    csel(a, 's54', f'0x{CH_BYTES:x}', f'0x{16*MB:x}')
    a(f's_add_u32 s52, s{P_WS}, s5')
    a(f's_addc_u32 s53, s{P_WS+1}, 0')
    a('s_and_b32 s53, s53, 0xffff')
    a('s_cmp_eq_u32 s6, 1')
    a('s_cbranch_scc1 K2_FFN')
    qkv_offsets(60, 61)
    a('s_mov_b32 s77, 0x3e0293ee')
    for i in range(128):
        a(f'v_mul_f32 v{128+i}, s77, v{128+i}')
    xp_epilogue(a, 4, 256, pack_plain(a, 4))
    a('s_branch K1_PEND')
    a.label('K2_FFN')
    a('s_nop 15')
    a('s_lshl_b32 s72, s60, 8')
    a('s_lshl_b32 s73, s69, 6')
    a('s_add_u32 s72, s72, s73')
    a('s_lshl_b32 s77, s72, 1')
    a('s_lshl_b32 s73, s61, 8')
    a('s_lshl_b32 s75, s70, 7')
    a('s_add_u32 s73, s73, s75')
    a(f's_mul_i32 s75, s73, {LDCH}')
    a('s_add_u32 s75, s75, s77')
    a('s_add_u32 s75, s75, 8192')
    a.vm = []
    a.lg = []
    epilogue_ffn2(a)
    a.label('K1_PEND')
    if PROF:
        a('s_waitcnt vmcnt(0)')
    stamp(a)
    stamp_dump(a, 64)
    a.label('K1_END')
    a('s_endpgm')
    a.label('K1_TAILA')
    a('s_nop 15')
    for f in later:
        f()
    a('s_branch K1_PEND')
    return name, kernel_desc(name, 256)


def k4_out(a):
    name = 'k4_out_kernel'
    kernel_header(a, name)
    a.reset_counters()
    a('s_cmp_ge_u32 s2, 256')
    a('s_cbranch_scc1 K4_END')
    stamp(a)
    load_kernargs(a)
    a('s_and_b32 s3, s2, 7')
    a('s_lshr_b32 s4, s2, 3')
    a('s_and_b32 s5, s4, 3')
    a('s_lshr_b32 s4, s4, 2')
    a('s_waitcnt lgkmcnt(0)')
    srd(a, 44, P_WS, CH_BYTES, WS_CH)
    srd(a, 52, P_WS, NSPLIT * 2 * MB, WS_PART)
    a('s_and_b32 s27, s27, 0xffff')
    a('s_and_b32 s35, s35, 0xffff')
    a('s_mov_b32 s51, 0x20000')
    a('s_mul_i32 s6, s3, 736')
    a(f's_mul_i32 s65, s4, {256*LDCH}')
    a('s_lshl_b32 s72, s6, 1')
    a('s_add_u32 s65, s65, s72')
    a('s_lshl_b32 s7, s5, 8')
    a('s_mov_b32 s67, 1024')
    a('s_mov_b32 s68, 0')
    gemm_setup(a, 128, LDCH)

    def whook(s):
        a('s_cmp_lt_u32 s6, 4096')
        a(f's_cselect_b32 s48, s{P_WO}, s{P_W2}')
        a(f's_cselect_b32 s49, s{P_WO+1}, s{P_W2+1}')
        csel(a, 's50', f'0x{4096*1024:x}', f'0x{1792*1024:x}')
        csel(a, 's72', f'0', f'4096')
        a('s_sub_u32 s72, s6, s72')
        a('s_lshl_b32 s66, s72, 10')
        a('s_add_u32 s66, s66, s7')
        a('s_add_u32 s6, s6, 32')
    gemm_main(a, 128, [dict(nst=23, params=PA, w_stage_hook=whook)])
    a('s_lshl_b32 s75, s3, 21')
    a('s_lshl_b32 s72, s4, 18')
    a('s_add_u32 s75, s75, s72')
    a('s_lshl_b32 s72, s70, 16')
    a('s_add_u32 s75, s75, s72')
    a('s_lshl_b32 s72, s5, 8')
    a('s_add_u32 s75, s75, s72')
    a('s_lshl_b32 s72, s69, 7')
    a('s_add_u32 s75, s75, s72')
    xp_setup(a, 98304, 1024)
    xp_epilogue(a, 2, 1024, pack_plain(a, 2))
    a.label('K4_PEND')
    if PROF:
        a('s_waitcnt vmcnt(0)')
    stamp(a)
    stamp_dump(a, 64)
    a.label('K4_END')
    a('s_endpgm')
    return name, kernel_desc(name, 192)


def k5_red(a):
    name = 'k5_red_kernel'
    kernel_header(a, name)
    a.reset_counters()
    a('s_cmp_ge_u32 s2, 512')
    a('s_cbranch_scc1 K5_END')
    load_kernargs(a)
    a('s_lshl_b32 s3, s2, 8')
    a('v_add_u32 v1, s3, v0')
    a('v_lshlrev_b32 v2, 4, v1')
    a('v_lshlrev_b32 v3, 5, v1')
    a('v_and_b32 v4, 63, v1')
    a('v_lshlrev_b32 v4, 4, v4')
    a('s_waitcnt lgkmcnt(0)')
    srd(a, 44, P_WS, NSPLIT * 2 * MB, WS_PART)
    srd(a, 48, P_X, 2 * MB)
    srd(a, 52, P_OUT, 2 * MB)
    srd(a, 56, P_B2, 1024)
    a('buffer_load_dwordx4 v[8:11], v2, s[48:51], 0 offen', tag='x')
    a('buffer_load_dwordx4 v[12:15], v4, s[56:59], 0 offen', tag='x')
    for s in range(NSPLIT):
        a(f's_mov_b32 s4, 0x{s*2*MB:x}')
        a(f'buffer_load_dwordx4 v[{16+s*4}:{19+s*4}], v2, s[44:47], s4 offen', tag=('p', s))
    a.wait_vm('x')
    for i in range(4):
        a(f'v_lshlrev_b32 v{96+2*i}, 16, v{8+i}')
        a(f'v_and_b32 v{97+2*i}, 0xffff0000, v{8+i}')
        a(f'v_lshlrev_b32 v{104+2*i}, 16, v{12+i}')
        a(f'v_and_b32 v{105+2*i}, 0xffff0000, v{12+i}')
    for i in range(8):
        a(f'v_add_f32 v{96+i}, v{96+i}, v{104+i}')
    for s in range(NSPLIT):
        a.wait_vm(('p', s))
        for i in range(4):
            a(f'v_lshlrev_b32 v104, 16, v{16+s*4+i}')
            a(f'v_and_b32 v105, 0xffff0000, v{16+s*4+i}')
            a(f'v_add_f32 v{96+2*i}, v{96+2*i}, v104')
            a(f'v_add_f32 v{97+2*i}, v{97+2*i}, v105')
    for i in range(4):
        a(f'v_cvt_pk_bf16_f32 v{8+i}, v{96+2*i}, v{97+2*i}')
    a('buffer_store_dwordx4 v[8:11], v2, s[52:55], 0 offen')
    a.label('K5_END')
    a('s_endpgm')
    return name, kernel_desc(name, 112)


def main():
    from attn import k3_attn
    a = Asm()
    descs = []
    launches = []
    n, d = k0_ln(a); descs.append(d); launches.append((n, 512, 256, 0))
    n, d = k12_proj(a); descs.append(d); launches.append((n, 256, 512, 163840))
    n, d = k3_attn(a); descs.append(d); launches.append((n, 256, 512, 163840))
    n, d = k4_out(a); descs.append(d); launches.append((n, 256, 512, 131072))
    n, d = k5_red(a); descs.append(d); launches.append((n, 512, 256, 0))
    hdr = open(f'cdna_kernels/{NAME}.s.ref').read().split('; @launch')[0]
    out = hdr
    for (n, g, b, l) in launches:
        out += f'; @launch kernel={n} grid=({g},1,1) block=({b},1,1) lds={l}\n'
    out += '.amdgcn_target "amdgcn-amd-amdhsa--gfx950"\n'
    out += a.finalize()
    out += ''.join(descs)
    path = sys.argv[1] if len(sys.argv) > 1 else f'cdna_kernels/{NAME}.s'
    open(path, 'w').write(out)
    print('wrote', path, len(out), 'bytes')


if __name__ == '__main__':
    main()
```

```python
from gen import *

QF = 32
SR = 64
PR = 96
FP = 112
OR = 144
TP = 208
CB = 208


def cstamp(a):
    if not PROF:
        return
    lab = f'CS{len(a.lines)}'
    a('s_lshl_b32 s100, s82, 8')
    a('s_add_u32 s100, s100, s70')
    a('s_cmp_eq_u32 s100, 3')
    a(f's_cbranch_scc0 {lab}')
    stamp(a)
    a.label(lab)


def m_phase(a, do_qk, do_pv, fill=()):
    a.lg = []
    seq = []
    if do_qk:
        for kt in range(2):
            for ds in range(8):
                seq.append(('k', kt, ds))
    if do_pv:
        for ks in range(4):
            for dt in range(4):
                seq.append(('v', dt, ks))
    D = 6

    def issue(n):
        kind, x, y = seq[n]
        r = FP + (n % 8) * 4
        if kind == 'k':
            a(f'ds_read_b128 v[{r}:{r+3}], v{8+y} offset:{x*8192}', tag=('f', n))
        else:
            for j in range(2):
                a(f'ds_read_b64_tr_b16 v[{r+2*j}:{r+2*j+1}], v{16+x} offset:{(16*y + 8*j)*256}', tag=('f', n))

    for n in range(min(D, len(seq))):
        issue(n)
    for n in range(len(seq)):
        kind, x, y = seq[n]
        r = FP + (n % 8) * 4
        a.wait_lg(('f', n))
        if kind == 'k':
            acc = SR + x * 16
            c = f'v[{CB}:{CB+15}]' if y == 0 else f'v[{acc}:{acc+15}]'
            a(f'v_mfma_f32_32x32x16_bf16 v[{acc}:{acc+15}], v[{r}:{r+3}], v[{QF+y*4}:{QF+y*4+3}], {c}')
        else:
            acc = OR + x * 16
            a(f'v_mfma_f32_32x32x16_bf16 v[{acc}:{acc+15}], v[{r}:{r+3}], v[{PR+y*4}:{PR+y*4+3}], v[{acc}:{acc+15}]')
        if n + D < len(seq):
            issue(n + D)
        if n % 2 == 1 and n // 2 < len(fill):
            fill[n // 2]()


def dma_k(a):
    a('s_mov_b32 m0, s80')
    a('s_add_u32 s72, s71, 32768')
    for t in range(4):
        a(f'buffer_load_dwordx4 v{2+t}, s[48:51], s72 offen offset:{t*1024} lds')
    a('s_xor_b32 s80, s80, 16384')


def dma_v(a):
    a('s_mov_b32 m0, s81')
    a('s_nop 0')
    for t in range(4):
        a(f'buffer_load_dwordx4 v6, s[52:55], s71 offen offset:{t*1024} lds')
    a('s_xor_b32 s81, s81, 16384')


def dma_fill(a):
    L = []
    for t in range(4):
        def f(t=t):
            a('s_mov_b32 m0, s80')
            a(f'buffer_load_dwordx4 v{2+t}, s[48:51], s72 offen offset:{t*1024} lds')
        L.append(f)
    for t in range(4):
        def f(t=t):
            a('s_mov_b32 m0, s81')
            a(f'buffer_load_dwordx4 v6, s[52:55], s71 offen offset:{t*1024} lds')
            if t == 3:
                a('s_xor_b32 s80, s80, 16384')
                a('s_xor_b32 s81, s81, 16384')
                a('s_add_u32 s71, s71, 32768')
        L.append(f)
    return L


def dma_pre(a):
    a('s_add_u32 s72, s71, 32768')
    a('s_cmp_eq_u32 s70, s69')
    a('s_cselect_b32 s72, s74, s72')


def v_phase(a):
    a('s_setprio 0')
    a('s_cmp_eq_u32 s70, s69')
    a('s_cbranch_scc0 K3_NOMASK')
    a('s_nop 15')
    for kt in range(2):
        for r0 in range(0, 16, 4):
            for k in range(4):
                r = r0 + k
                cst = kt * 32 + 8 * (r // 4) + r % 4
                a(f'v_cmp_gt_i32 s[{8+2*k}:{9+2*k}], {cst}, v22')
            for k in range(4):
                r = r0 + k
                a(f'v_cndmask_b32 v{SR+kt*16+r}, v{SR+kt*16+r}, v29, s[{8+2*k}:{9+2*k}]')
    a.label('K3_NOMASK')
    a('s_nop 15')
    a(f'v_max3_f32 v23, v{SR}, v{SR+1}, v{SR+2}')
    a(f'v_max3_f32 v24, v{SR+3}, v{SR+4}, v{SR+5}')
    for i in range(6, 30, 4):
        a(f'v_max3_f32 v23, v23, v{SR+i}, v{SR+i+1}')
        a(f'v_max3_f32 v24, v24, v{SR+i+2}, v{SR+i+3}')
    a(f'v_max3_f32 v23, v23, v{SR+30}, v{SR+31}')
    a('v_max_f32 v23, v23, v24')
    a('v_mov_b32 v24, v23')
    a('v_permlane32_swap_b32 v23, v24')
    a('v_max_f32 v23, v23, v24')
    a('s_cmp_eq_u32 s70, 0')
    a('s_cbranch_scc1 K3_RARE')
    a('v_cmp_lt_f32 vcc, 0x41a00000, v23')
    a('s_cbranch_vccz K3_SKIP')
    a.label('K3_RARE')
    a('s_cmp_eq_u32 s70, 0')
    csel(a, 's72', '0xff7fffff', '0')
    a('v_max_f32 v24, s72, v23')
    a('v_cmp_lt_f32 vcc, 0xefa18f08, v23')
    a('v_cndmask_b32 v24, 0, v24, vcc')
    a('v_add_f32 v20, v20, v24')
    a('v_sub_f32 v25, 0, v24')
    a('v_exp_f32 v25, v25')
    a('v_sub_f32 v26, 0, v20')
    for i in range(32):
        a(f'v_sub_f32 v{SR+i}, v{SR+i}, v24')
    for i in range(16):
        a(f'v_mov_b32 v{CB+i}, v26')
    a('s_cmp_eq_u32 s70, 0')
    a('s_cbranch_scc1 K3_SKIP')
    a('v_mul_f32 v21, v21, v25')
    for i in range(64):
        a(f'v_mul_f32 v{OR+i}, v{OR+i}, v25')
    a.label('K3_SKIP')
    for i in range(32):
        a(f'v_exp_f32 v{SR+i}, v{SR+i}')
    a(f'v_add_f32 v23, v{SR}, v{SR+1}')
    a(f'v_add_f32 v24, v{SR+2}, v{SR+3}')
    for i in range(4, 32, 2):
        a(f'v_add_f32 v23, v23, v{SR+i}')
        a(f'v_add_f32 v24, v24, v{SR+i+1}')
    for i in range(16):
        a(f'v_cvt_pk_bf16_f32 v{PR+i}, v{SR+2*i}, v{SR+2*i+1}')
    a('v_add_f32 v21, v21, v23')
    a('v_add_f32 v21, v21, v24')
    for i in range(8):
        a(f'v_xor_b32 v{8+i}, 0x4000, v{8+i}')
    a('s_setprio 2')


def merge_out(a, grp):
    own = OR + grp * 32
    oth = OR + (1 - grp) * 32
    a('v_mov_b32 v26, v21')
    a('v_mov_b32 v23, v21')
    a('v_permlane32_swap_b32 v26, v23')
    a('v_add_f32 v21, v26, v23')
    for i in range(8):
        a(f'ds_write_b128 v30, v[{oth+4*i}:{oth+4*i+3}] offset:{i*1024}')
    a('ds_write_b64 v31, v[20:21]')
    a('s_waitcnt lgkmcnt(0)')
    a('s_barrier')
    a('v_xor_b32 v23, 0x10000, v30')
    a('v_xor_b32 v24, 0x800, v31')
    for i in range(8):
        a(f'ds_read_b128 v[{TP+4*i}:{TP+4*i+3}], v23 offset:{i*1024}')
    a('ds_read_b64 v[240:241], v24')
    a('s_waitcnt lgkmcnt(0)')
    a('s_barrier')
    a('v_mov_b32 v26, 0xff7fffff')
    a('v_cmp_lt_f32 vcc, 0, v21')
    a('v_cndmask_b32 v20, v26, v20, vcc')
    a('v_cmp_lt_f32 vcc, 0, v241')
    a('v_cndmask_b32 v240, v26, v240, vcc')
    a('v_max_f32 v23, v20, v240')
    a('v_sub_f32 v24, v20, v23')
    a('v_sub_f32 v25, v240, v23')
    a('v_exp_f32 v24, v24')
    a('v_exp_f32 v25, v25')
    a('v_mul_f32 v21, v21, v24')
    a('v_fmac_f32 v21, v241, v25')
    a('v_rcp_f32 v21, v21')
    a('v_mul_f32 v24, v24, v21')
    a('v_mul_f32 v25, v25, v21')
    for i in range(32):
        a(f'v_mul_f32 v{own+i}, v{own+i}, v24')
        a(f'v_fmac_f32 v{own+i}, v{TP+i}, v25')
    for dtl in range(2):
        acc = own + dtl * 16
        t = FP + dtl * 8
        for g in range(4):
            a(f'v_cvt_pk_bf16_f32 v{t+2*g}, v{acc+4*g}, v{acc+4*g+1}')
            a(f'v_cvt_pk_bf16_f32 v{t+2*g+1}, v{acc+4*g+2}, v{acc+4*g+3}')
        for k in (0, 2):
            b = t + 2 * k
            a(f'v_permlane32_swap_b32 v{b}, v{b+2}')
            a(f'v_permlane32_swap_b32 v{b+1}, v{b+3}')
            a(f'ds_write_b128 v{242 + dtl*2 + k//2}, v[{b}:{b+3}]')
    for q in range(4):
        a(f'ds_read_b128 v[{FP+16+4*q}:{FP+16+4*q+3}], v246 offset:{q*1024}')
    for q in range(4):
        a(f's_waitcnt lgkmcnt({3-q})')
        a(f'buffer_store_dwordx4 v[{FP+16+4*q}:{FP+16+4*q+3}], v7, s[56:59], s73 offen {STMOD}')
        if q < 3:
            a(f's_add_u32 s73, s73, {8*LDCH}')


def k3_attn(a):
    name = 'k3_attn_kernel'
    kernel_header(a, name)
    a.reset_counters()
    a('s_cmp_ge_u32 s2, 256')
    a('s_cbranch_scc1 K3_END')
    stamp(a)
    load_kernargs(a)
    a('v_and_b32 v1, 63, v0')
    a('v_lshrrev_b32 v23, 6, v0')
    a('v_readfirstlane_b32 s64, v23')
    a('s_lshr_b32 s65, s64, 2')
    a('s_and_b32 s66, s64, 3')
    a('s_and_b32 s3, s2, 7')
    a('s_lshr_b32 s4, s2, 3')
    a('s_and_b32 s5, s4, 3')
    a('s_lshl_b32 s67, s3, 2')
    a('s_add_u32 s67, s67, s5')
    a('s_lshr_b32 s68, s4, 2')
    a('s_mov_b32 s83, 0x3e0293ee')
    a('s_mov_b32 s84, 0x3e0293ee')
    a('s_mov_b32 s85, 0x3e0293ee')
    a('s_waitcnt lgkmcnt(0)')
    srd(a, 44, P_WS, 16 * MB, WS_Q)
    srd(a, 48, P_WS, 16 * MB, WS_K)
    srd(a, 52, P_WS, 16 * MB, WS_V)
    srd(a, 56, P_WS, CH_BYTES, WS_CH)
    a('v_lshrrev_b32 v23, 4, v1')
    a('v_and_b32 v24, 15, v1')
    a('s_lshl_b32 s72, s66, 12')
    a('v_lshlrev_b32 v25, 8, v23')
    a('v_add_u32 v25, s72, v25')
    for t in range(4):
        a(f'v_add_u32 v26, {4*t}, v23')
        a('v_xor_b32 v26, v24, v26')
        a(f'v_lshl_add_u32 v{2+t}, v26, 4, v25')
    a('v_lshrrev_b32 v26, 2, v24')
    a('v_xor_b32 v26, v26, v23')
    a('v_lshl_add_u32 v6, v26, 6, v25')
    a('v_and_b32 v26, 3, v1')
    a('v_lshl_add_u32 v6, v26, 4, v6')
    a('s_lshl_b32 s72, s65, 16')
    a('v_and_b32 v23, 31, v1')
    a('v_lshlrev_b32 v23, 8, v23')
    a('v_add_u32 v23, s72, v23')
    a('v_lshrrev_b32 v24, 5, v1')
    a('v_and_b32 v25, 15, v1')
    a('v_xor_b32 v25, v24, v25')
    a('v_lshl_add_u32 v27, v25, 4, v23')
    a('v_bfe_u32 v25, v1, 2, 2')
    a('v_lshl_add_u32 v23, v24, 2, v25')
    a('v_lshlrev_b32 v23, 8, v23')
    a('s_add_u32 s72, s72, 32768')
    a('v_add_u32 v23, s72, v23')
    a('v_lshl_add_u32 v23, v25, 6, v23')
    a('v_bfe_u32 v25, v1, 4, 1')
    a('v_lshl_add_u32 v23, v25, 5, v23')
    a('v_and_b32 v25, 3, v1')
    a('v_lshl_add_u32 v28, v25, 3, v23')
    a('v_and_b32 v22, 31, v1')
    a('s_lshl_b32 s72, s66, 5')
    a('s_lshl_b32 s73, s65, 6')
    a('s_sub_i32 s72, s72, s73')
    a('v_add_u32 v22, s72, v22')
    a('v_lshlrev_b32 v23, 2, v24')
    a('v_sub_u32 v22, v22, v23')
    a('v_mov_b32 v29, 0xf149f2ca')
    a('s_lshl_b32 s72, s65, 16')
    a('s_lshl_b32 s73, s66, 13')
    a('s_add_u32 s72, s72, s73')
    a('s_add_u32 s72, s72, 32768')
    a('v_lshlrev_b32 v30, 4, v1')
    a('v_add_u32 v30, s72, v30')
    a('s_lshl_b32 s72, s64, 9')
    a('s_add_u32 s72, s72, 131072')
    a('v_lshlrev_b32 v31, 3, v1')
    a('v_add_u32 v31, s72, v31')
    a('v_lshrrev_b32 v25, 3, v1')
    a('v_and_b32 v26, 7, v1')
    a(f's_mov_b32 s72, {LDCH}')
    a('v_mul_lo_u32 v7, v25, s72')
    a('v_lshl_add_u32 v7, v26, 4, v7')
    a('s_lshl_b32 s72, s65, 16')
    a('s_lshl_b32 s73, s66, 13')
    a('s_add_u32 s72, s72, s73')
    a('s_add_u32 s72, s72, 32768')
    a('v_xor_b32 v23, v25, v26')
    a('v_lshlrev_b32 v25, 7, v25')
    a('v_lshl_add_u32 v246, v23, 4, v25')
    a('v_add_u32 v246, s72, v246')
    a('v_and_b32 v23, 31, v1')
    a('v_xor_b32 v26, v24, v26')
    a('v_lshlrev_b32 v25, 7, v23')
    a('v_lshl_add_u32 v242, v26, 4, v25')
    a('v_add_u32 v242, s72, v242')
    for c in range(1, 4):
        a(f'v_xor_b32 v{242+c}, {32*c}, v242')
    a('v_lshlrev_b32 v255, 8, v23')
    a('v_lshl_add_u32 v255, v24, 4, v255')
    a('s_sub_u32 s69, 15, s68')
    a('s_mov_b32 s82, 0')

    def qloads(qreg):
        a('s_lshl_b32 s72, s67, 19')
        a(f's_lshl_b32 s73, s{qreg}, 15')
        a('s_add_u32 s72, s72, s73')
        a('s_lshl_b32 s73, s66, 13')
        a('s_add_u32 s72, s72, s73')
        for ds in range(8):
            a(f'buffer_load_dwordx4 v[{QF+4*ds}:{QF+4*ds+3}], v255, s[44:47], s72 offen offset:{ds*32}')
    a('s_lshl_b32 s75, s67, 19')
    a('s_lshl_b32 s72, s65, 14')
    a('s_add_u32 s75, s75, s72')
    a('s_sub_u32 s71, s75, 32768')
    a('s_lshl_b32 s80, s65, 16')
    a('s_lshl_b32 s72, s66, 12')
    a('s_add_u32 s80, s80, s72')
    a('s_add_u32 s81, s80, 32768')
    dma_k(a)
    qloads(69)
    for ds in range(8):
        a(f'v_xor_b32 v{8+ds}, {ds*32}, v27')
    for dt in range(4):
        a(f'v_xor_b32 v{16+dt}, {dt*64}, v28')
    a('s_mov_b32 s74, s75')
    a.label('K3_PASS')
    a('s_mov_b32 s71, s75')
    a('v_mov_b32 v20, 0')
    a('v_mov_b32 v21, 0')
    for i in range(16):
        a(f'v_mov_b32 v{CB+i}, 0')
    for i in range(64):
        a(f'v_mov_b32 v{OR+i}, 0')
    a('s_mov_b32 s70, 0')
    a('s_cmp_eq_u32 s65, 1')
    a('s_cbranch_scc0 K3_NOSTAG')
    a('s_barrier')
    a.label('K3_NOSTAG')
    a('s_cmp_eq_u32 s82, 0')
    a('s_cbranch_scc1 K3_W0')
    a('s_waitcnt vmcnt(4)')
    a('s_branch K3_W1')
    a.label('K3_W0')
    a('s_waitcnt vmcnt(0)')
    a.label('K3_W1')
    a('s_barrier')
    if PROF:
        a('s_cmp_eq_u32 s82, 0')
        a('s_cbranch_scc0 K3_PS1')
        stamp(a)
        a.label('K3_PS1')
    dma_pre(a)
    m_phase(a, True, False, dma_fill(a))
    a('s_barrier')
    a.label('K3_LOOP')
    v_phase(a)
    a('s_waitcnt vmcnt(0)')
    a('s_barrier')
    a('s_cmp_eq_u32 s70, s69')
    a('s_cbranch_scc1 K3_FINAL')
    a('s_add_u32 s70, s70, 1')
    dma_pre(a)
    m_phase(a, True, True, dma_fill(a))
    for dt in range(4):
        a(f'v_xor_b32 v{16+dt}, 0x4000, v{16+dt}')
    a('s_barrier')
    a('s_branch K3_LOOP')
    a.label('K3_FINAL')
    a('s_cmp_eq_u32 s82, 0')
    a('s_cbranch_scc0 K3_NOQ')
    qloads(68)
    a.label('K3_NOQ')
    m_phase(a, False, True)
    for dt in range(4):
        a(f'v_xor_b32 v{16+dt}, 0x4000, v{16+dt}')
    a('s_barrier')
    a('s_cmp_eq_u32 s65, 0')
    a('s_cbranch_scc0 K3_NOSTAG2')
    a('s_barrier')
    a.label('K3_NOSTAG2')
    a('s_nop 15')
    a('s_lshl_b32 s72, s69, 7')
    a('s_lshl_b32 s73, s66, 5')
    a('s_add_u32 s72, s72, s73')
    a(f's_mul_i32 s73, s72, {LDCH}')
    a('s_lshl_b32 s72, s67, 8')
    a('s_add_u32 s73, s73, s72')
    a('s_lshl_b32 s72, s65, 7')
    a('s_add_u32 s73, s73, s72')
    a('s_cmp_eq_u32 s65, 1')
    a('s_cbranch_scc1 K3_MERGE1')
    merge_out(a, 0)
    a('s_branch K3_MERGED')
    a.label('K3_MERGE1')
    merge_out(a, 1)
    a.label('K3_MERGED')
    a('s_nop 7')
    a('s_cmp_eq_u32 s82, 1')
    a('s_cbranch_scc1 K3_PEND')
    stamp(a)
    a('s_mov_b32 s82, 1')
    a('s_mov_b32 s69, s68')
    a('s_mov_b32 s74, 0x7ff00000')
    a('s_branch K3_PASS')
    a.label('K3_PEND')
    stamp(a)
    stamp_dump(a, 64)
    a.label('K3_END')
    a('s_endpgm')
    return name, kernel_desc(name, 256)
```

```python
import sys, os
sys.path.insert(0, os.path.dirname(__file__))
from asmlib import Asm

NAME = 'parallel_sum__compressed_kv_cla__dense_activation_squared_relu__prompt'

MB = 1 << 20
WS_XN = 0
WS_Q = 16 * MB
WS_K = 32 * MB
WS_V = 48 * MB
WS_CH = 64 * MB
WS_PART = 96 * MB
LDCH = 5888 * 2
CH_BYTES = 2048 * LDCH
NSPLIT = 8

P_X, P_CKV, P_WQ, P_WUK, P_WUV, P_WO, P_BX, P_W1 = 16, 18, 20, 22, 24, 26, 28, 30
P_B1, P_W2, P_B2, P_OUT, P_DBG, P_WS = 32, 34, 36, 38, 40, 42


def load_kernargs(a):
    a('s_load_dwordx16 s[16:31], s[0:1], 0')
    a('s_load_dwordx8 s[32:39], s[0:1], 64')
    a('s_load_dwordx4 s[40:43], s[0:1], 96')


def srd(a, d, ptr, nbytes, off=0):
    if off:
        a(f's_add_u32 s{d}, s{ptr}, 0x{off:x}')
        a(f's_addc_u32 s{d+1}, s{ptr+1}, 0')
        a(f's_and_b32 s{d+1}, s{d+1}, 0xffff')
    else:
        a(f's_mov_b32 s{d}, s{ptr}')
        a(f's_and_b32 s{d+1}, s{ptr+1}, 0xffff')
    a(f's_mov_b32 s{d+2}, 0x{nbytes:x}')
    a(f's_mov_b32 s{d+3}, 0x20000')


def csel(a, dst, x, y):
    a(f's_mov_b32 s101, {y}')
    a(f's_cselect_b32 {dst}, {x}, s101')


PROF = os.environ.get('PROF', '0') == '1'
NSTAMP = [0]


def stamp(a):
    if not PROF:
        return
    i = NSTAMP[0]
    NSTAMP[0] += 1
    assert i < 5
    if i == 0:
        a('s_memrealtime s[96:97]')
    a(f's_memtime s[{86+2*i}:{87+2*i}]')


def stamp_dump(a, wave_sgpr):
    if not PROF:
        return
    n = NSTAMP[0]
    NSTAMP[0] = 0
    a('s_memrealtime s[98:99]')
    a('s_waitcnt lgkmcnt(0) vmcnt(0)')
    a(f's_and_b32 s100, s{wave_sgpr}, 3')
    a('s_cmp_eq_u32 s100, 0')
    lab = f'PD{id(a)}_{len(a.lines)}'
    a(f's_cbranch_scc0 {lab}')
    a('s_and_b32 s100, s2, 63')
    a('s_cmp_eq_u32 s100, 0')
    a(f's_cbranch_scc0 {lab}')
    srd(a, 60, P_DBG, 256)
    a('s_lshr_b32 s100, s2, 6')
    a('s_lshl_b32 s100, s100, 6')
    a(f's_lshl_b32 s101, s{wave_sgpr}, 3')
    a('s_add_u32 s100, s100, s101')
    a('v_mov_b32 v1, 0')
    for i in range(n):
        a(f'v_mov_b32 v2, s{86+2*i}')
        a(f'buffer_store_dword v2, v1, s[60:63], s100 offen offset:{4*i}')
    a('v_mov_b32 v2, s96')
    a(f'buffer_store_dword v2, v1, s[60:63], s100 offen offset:24')
    a('v_mov_b32 v2, s98')
    a(f'buffer_store_dword v2, v1, s[60:63], s100 offen offset:28')
    a.label(lab)


def kernel_header(a, name):
    a.raw(f'.text\n.globl {name}\n.p2align 8\n.type {name},@function\n{name}:')


def kernel_desc(name, vgpr, sgpr=102):
    acc = (vgpr + 3) // 4 * 4
    return f'''.section .rodata,"a"
.p2align 6
.amdhsa_kernel {name}
  .amdhsa_next_free_vgpr {vgpr}
  .amdhsa_next_free_sgpr {sgpr}
  .amdhsa_accum_offset {acc}
  .amdhsa_group_segment_fixed_size 0
  .amdhsa_kernarg_size 112
  .amdhsa_user_sgpr_count 2
  .amdhsa_user_sgpr_kernarg_segment_ptr 1
  .amdhsa_system_sgpr_workgroup_id_x 1
.end_amdhsa_kernel
'''


def w_voffsets(a, TN, sld, vd):
    if TN == 256:
        a('v_lshrrev_b32 v14, 5, v1')
        a('s_lshl_b32 s72, s64, 2')
        a('v_add_u32 v15, s72, v14')
        a(f'v_mul_lo_u32 v15, v15, s{sld}')
        a('v_bfe_u32 v16, v1, 2, 3')
        a('v_and_b32 v17, 3, v1')
        a('v_xor_b32 v18, v16, v14')
        a('v_lshlrev_b32 v18, 6, v18')
        a('v_lshl_add_u32 v18, v17, 4, v18')
        a(f'v_add_u32 v{vd}, v15, v18')
        a('v_xor_b32 v18, 2, v14')
        a('v_xor_b32 v18, v16, v18')
        a('v_lshlrev_b32 v18, 6, v18')
        a('v_lshl_add_u32 v18, v17, 4, v18')
        a(f'v_add_u32 v{vd+1}, v15, v18')
        a(f's_lshl_b32 s72, s{sld}, 1')
        a(f'v_add_u32 v{vd+1}, s72, v{vd+1}')
    else:
        a('v_lshrrev_b32 v14, 4, v1')
        a('s_lshl_b32 s72, s64, 2')
        a('v_add_u32 v15, s72, v14')
        a(f'v_mul_lo_u32 v15, v15, s{sld}')
        a('v_bfe_u32 v16, v1, 2, 2')
        a('v_and_b32 v17, 3, v1')
        a('v_xor_b32 v18, v16, v14')
        a('v_lshlrev_b32 v18, 6, v18')
        a('v_lshl_add_u32 v18, v17, 4, v18')
        a(f'v_add_u32 v{vd}, v15, v18')
        a(f'v_mov_b32 v{vd+1}, v{vd}')


def gemm_setup(a, TN, lda):
    WN = TN // 64
    WM = 8 // WN
    JM = (256 // WM) // 32
    SS = 16384 + TN * 64
    a('v_and_b32 v1, 63, v0')
    a('v_lshrrev_b32 v14, 6, v0')
    a('v_readfirstlane_b32 s64, v14')
    a(f's_and_b32 s69, s64, {WN-1}')
    a(f's_lshr_b32 s70, s64, {WN.bit_length()-1}')
    a('v_lshrrev_b32 v14, 2, v1')
    a('v_lshlrev_b32 v15, 5, v0')
    a('s_lshl_b32 s72, s64, 5')
    a('v_add_u32 v14, s72, v14')
    a(f's_mov_b32 s73, {lda}')
    a('v_mul_lo_u32 v14, v14, s73')
    a('v_lshrrev_b32 v15, 4, v1')
    a('v_and_b32 v16, 3, v1')
    a('v_xor_b32 v15, v15, v16')
    a('v_lshl_add_u32 v2, v15, 4, v14')
    a(f'v_add_u32 v3, {16*lda}, v2')
    w_voffsets(a, TN, 67, 4)
    a('v_and_b32 v14, 31, v1')
    a(f's_mul_i32 s72, s70, {(256//WM)*64}')
    a('v_lshlrev_b32 v14, 6, v14')
    a('v_add_u32 v14, s72, v14')
    a('v_lshrrev_b32 v15, 5, v1')
    a('v_bfe_u32 v16, v1, 2, 2')
    a('v_xor_b32 v15, v15, v16')
    a('v_lshl_add_u32 v6, v15, 4, v14')
    a('v_xor_b32 v7, 32, v6')
    a(f'v_add_u32 v8, {2*SS}, v6')
    a(f'v_add_u32 v9, {2*SS}, v7')
    RS = TN * 2
    a('v_lshrrev_b32 v14, 5, v1')
    a('v_lshlrev_b32 v14, 3, v14')
    a('v_bfe_u32 v15, v1, 2, 2')
    a('v_add_u32 v14, v14, v15')
    a(f'v_mul_u32_u24 v14, {RS}, v14')
    a('s_lshl_b32 s72, s69, 1')
    a('v_xor_b32 v15, s72, v15')
    a('v_lshl_add_u32 v14, v15, 6, v14')
    a('v_bfe_u32 v15, v1, 4, 1')
    a('v_lshl_add_u32 v14, v15, 5, v14')
    a('v_and_b32 v15, 3, v1')
    a('v_lshl_add_u32 v14, v15, 3, v14')
    a('v_add_u32 v10, 16384, v14')
    a('v_xor_b32 v11, 64, v10')
    a(f'v_add_u32 v12, {2*SS}, v10')
    a(f'v_add_u32 v13, {2*SS}, v11')
    a('s_lshl_b32 s71, s64, 11')
    if TN == 256:
        a('s_mov_b32 s74, s71')
    else:
        a('s_lshl_b32 s74, s64, 10')


PA = dict(act=44, w=48, s_act=65, s_w=66, s_wstep=68, vw=4)


def gemm_main(a, TN, tiles, pre_loop_hook=None):
    WN = TN // 64
    WM = 8 // WN
    JM = (256 // WM) // 32
    SS = 16384 + TN * 64
    RS = TN * 2
    stages = []
    for ti, t in enumerate(tiles):
        for k in range(t['nst']):
            stages.append((ti, k))
    nst = len(stages)

    def dma_list(s):
        ti, k = stages[s]
        P = tiles[ti]['params']
        hook = tiles[ti].get('w_stage_hook')
        buf = s % 4
        base = buf * SS
        L = []
        for t in range(2):
            def f(t=t):
                a(f's_add_u32 m0, s71, {base + t*1024}')
                a(f'buffer_load_dwordx4 v{2+t}, s[{P["act"]}:{P["act"]+3}], s{P["s_act"]} offen lds', tag=('st', s))
                if t == 1:
                    a(f's_add_u32 s{P["s_act"]}, s{P["s_act"]}, 64')
            L.append(f)
        nw = 2 if TN == 256 else 1
        for t in range(nw):
            def f(t=t):
                if t == 0 and hook:
                    hook(k)
                a(f's_add_u32 m0, s74, {base + 16384 + t*1024}')
                a(f'buffer_load_dwordx4 v{P["vw"]+t}, s[{P["w"]}:{P["w"]+3}], s{P["s_w"]} offen lds', tag=('st', s))
                if t == nw - 1:
                    a(f's_add_u32 s{P["s_w"]}, s{P["s_w"]}, s{P["s_wstep"]}')
            L.append(f)
        return L

    def read_list(s, ks, b):
        buf = s % 4
        win = buf // 2
        so = (buf % 2) * SS
        L = []
        for i in range(2):
            for j in range(2):
                r = 32 + b * 8 + i * 4 + j * 2
                L.append(lambda r=r, i=i, j=j: a(f'ds_read_b64_tr_b16 v[{r}:{r+1}], v{10 + win*2 + i} offset:{so + (16*ks + 4*j)*RS}', tag=('fr', s, ks)))
        for jm in range(JM):
            r = 48 + b * 16 + jm * 4
            L.append(lambda r=r, jm=jm: a(f'ds_read_b128 v[{r}:{r+3}], v{6 + win*2 + ks} offset:{so + jm*2048}', tag=('fr', s, ks)))
        return L

    def mfmas(b, first, fill):
        n = 2 * JM
        per = (len(fill) + n - 1) // n if fill else 0
        k = 0
        for i in range(2):
            for jm in range(JM):
                acc = 128 + (i * JM + jm) * 16
                c = '0' if first else f'v[{acc}:{acc+15}]'
                a(f'v_mfma_f32_32x32x16_bf16 v[{acc}:{acc+15}], v[{32+b*8+i*4}:{32+b*8+i*4+3}], v[{48+b*16+jm*4}:{48+b*16+jm*4+3}], {c}')
                for _ in range(per):
                    if k < len(fill):
                        fill[k]()
                        k += 1
        while k < len(fill):
            fill[k]()
            k += 1

    for s in range(min(3, nst)):
        for f in dma_list(s):
            f()
    if pre_loop_hook:
        pre_loop_hook()
    a.wait_vm(('st', 0))
    a('s_barrier')
    stamp(a)
    for f in read_list(0, 0, 0):
        f()
    for s in range(nst):
        ti, k = stages[s]
        a.wait_lg(('fr', s, 0))
        xf = tiles[ti]['extra'](k) if tiles[ti].get('extra') else []
        mfmas(0, k == 0, read_list(s, 1, 1) + xf)
        fill = []
        if s + 1 < nst:
            a.wait_vm(('st', s + 1))
            a('s_barrier')
            fill = read_list(s + 1, 0, 0)
            if s + 3 < nst:
                fill = fill + dma_list(s + 3)
        a.wait_lg(('fr', s, 1))
        mfmas(1, False, fill)
        if k == tiles[ti]['nst'] - 1:
            stamp(a)
            if tiles[ti].get('mid_hook'):
                tiles[ti]['mid_hook']()


def epi_bf16_store(a, JM, sbase, rowstep, vofs, src_of):
    pass


def epilogue_qkv(a, JM=4, scale=False):
    if scale:
        a('s_mov_b32 s77, 0x3e0293ee')
        for i in range(JM * 32):
            a(f'v_mul_f32 v{128+i}, s77, v{128+i}')
    a('v_and_b32 v14, 31, v1')
    a('v_lshlrev_b32 v14, 8, v14')
    a('v_lshrrev_b32 v15, 5, v1')
    a('v_lshl_add_u32 v14, v15, 4, v14')
    n = 0
    for jm in range(JM):
        a(f's_add_u32 s76, s75, {jm*32*256}')
        for i in range(2):
            acc = 128 + (i * JM + jm) * 16
            t = 80 + (n % 4) * 8
            n += 1
            for g in range(4):
                a(f'v_cvt_pk_bf16_f32 v{t+2*g}, v{acc+4*g}, v{acc+4*g+1}')
                a(f'v_cvt_pk_bf16_f32 v{t+2*g+1}, v{acc+4*g+2}, v{acc+4*g+3}')
            for k in (0, 2):
                b = t + 2 * k
                a(f'v_permlane32_swap_b32 v{b}, v{b+2}')
                a(f'v_permlane32_swap_b32 v{b+1}, v{b+3}')
                a(f'buffer_store_dwordx4 v[{b}:{b+3}], v14, s[52:55], s76 offen offset:{i*64 + k*16}')


def xp_setup(a, lds_base, rs, vw=22, vr=26, vs=14):
    a('s_lshl_b32 s72, s64, 12')
    a(f's_add_u32 s72, s72, {lds_base}')
    a('v_and_b32 v15, 31, v1')
    a('v_lshrrev_b32 v16, 5, v1')
    a('v_and_b32 v17, 7, v1')
    a('v_xor_b32 v16, v16, v17')
    a('v_lshlrev_b32 v15, 7, v15')
    a(f'v_lshl_add_u32 v{vw}, v16, 4, v15')
    a(f'v_add_u32 v{vw}, s72, v{vw}')
    for c in range(1, 4):
        a(f'v_xor_b32 v{vw+c}, {32*c}, v{vw}')
    a('v_lshrrev_b32 v15, 3, v1')
    a('v_xor_b32 v16, v15, v17')
    a('v_lshlrev_b32 v18, 7, v15')
    a(f'v_lshl_add_u32 v{vr}, v16, 4, v18')
    a(f'v_add_u32 v{vr}, s72, v{vr}')
    a(f's_mov_b32 s72, {rs}')
    a(f'v_mul_lo_u32 v{vs}, v15, s72')
    a(f'v_lshl_add_u32 v{vs}, v17, 4, v{vs}')


def xp_epilogue(a, JM, rs, pack, defer=False, srd_=52, vw=22, vr=26, vs=14):
    later = []
    pend = []

    def mk(b, jm, q):
        def f():
            a(f's_add_u32 s76, s75, {(jm*32 + q*8)*rs}')
            a(f'buffer_store_dwordx4 v[{b}:{b+3}], v{vs}, s[{srd_}:{srd_+3}], s76 offen')
        return f

    for jm in range(JM):
        for i in range(2):
            t = pack(i, jm)
            for k in (0, 2):
                b = t + 2 * k
                a(f'v_permlane32_swap_b32 v{b}, v{b+2}')
                a(f'v_permlane32_swap_b32 v{b+1}, v{b+3}')
                a(f'ds_write_b128 v{vw + i*2 + k//2}, v[{b}:{b+3}]', tag=('xw', jm))
        cur = []
        for q in range(4):
            if jm == 0:
                b = 128 + (q // 2) * JM * 16 + 8 + (q % 2) * 4
            else:
                b = 80 + (jm - 1) * 16 + q * 4
            a(f'ds_read_b128 v[{b}:{b+3}], v{vr} offset:{q*1024}', tag=('xr', jm))
            cur.append(mk(b, jm, q))
        if pend:
            a.wait_lg(('xr', jm - 1))
            for f in pend:
                f()
            pend = []
        if defer and jm >= 1:
            later.extend(cur)
        else:
            pend = cur
    a.wait_lg(('xr', JM - 1))
    for f in pend:
        f()
    return later


def pack_plain(a, JM):
    def pack(i, jm):
        acc = 128 + (i * JM + jm) * 16
        for g in range(4):
            a(f'v_cvt_pk_bf16_f32 v{acc+2*g}, v{acc+4*g}, v{acc+4*g+1}')
            a(f'v_cvt_pk_bf16_f32 v{acc+2*g+1}, v{acc+4*g+2}, v{acc+4*g+3}')
        return acc
    return pack


def epilogue_ffn2(a, JM=4):
    a('v_lshrrev_b32 v15, 5, v1')
    a('v_lshlrev_b32 v16, 3, v15')
    for i in range(2):
        for g in range(4):
            r = 64 + (i * 4 + g) * 2
            a(f'buffer_load_dwordx2 v[{r}:{r+1}], v16, s[56:59], s77 offen offset:{i*64 + g*16}', tag='bias')
    xp_setup(a, 131072, LDCH)
    a.wait_vm('bias')
    for i in range(2):
        for g in range(4):
            r = 64 + (i * 4 + g) * 2
            o = 32 + (i * 4 + g) * 4
            a(f'v_lshlrev_b32 v{o}, 16, v{r}')
            a(f'v_and_b32 v{o+1}, 0xffff0000, v{r}')
            a(f'v_lshlrev_b32 v{o+2}, 16, v{r+1}')
            a(f'v_and_b32 v{o+3}, 0xffff0000, v{r+1}')

    def pack(i, jm):
        acc = 128 + (i * JM + jm) * 16
        for g in range(4):
            for h in range(2):
                r0 = acc + 4 * g + 2 * h
                bo = 32 + (i * 4 + g) * 4 + 2 * h
                d = acc + 2 * g + h
                x = 27 + 2 * h
                a(f'v_cvt_pk_bf16_f32 v{x}, v{r0}, v{r0+1}')
                a(f'v_and_b32 v{x+1}, 0xffff0000, v{x}')
                a(f'v_lshlrev_b32 v{x}, 16, v{x}')
                a(f'v_add_f32 v{x}, v{x}, v{bo}')
                a(f'v_add_f32 v{x+1}, v{x+1}, v{bo+1}')
                a(f'v_cvt_pk_bf16_f32 v{x}, v{x}, v{x+1}')
                a(f'v_and_b32 v{x+1}, 0xffff0000, v{x}')
                a(f'v_lshlrev_b32 v{x}, 16, v{x}')
                a(f'v_max_f32 v{x}, 0, v{x}')
                a(f'v_max_f32 v{x+1}, 0, v{x+1}')
                a(f'v_mul_f32 v{x}, v{x}, v{x}')
                a(f'v_mul_f32 v{x+1}, v{x+1}, v{x+1}')
                a(f'v_cvt_pk_bf16_f32 v{d}, v{x}, v{x+1}')
        return acc
    xp_epilogue(a, JM, LDCH, pack)


def epilogue_ffn(a, JM=4):
    a('v_lshrrev_b32 v15, 5, v1')
    a('v_lshlrev_b32 v16, 3, v15')
    for i in range(2):
        for g in range(4):
            r = 16 + 0
    for i in range(2):
        for g in range(4):
            r = 96 + (i * 4 + g) * 2
            a(f'buffer_load_dwordx2 v[{r}:{r+1}], v16, s[56:59], s77 offen offset:{i*64 + g*16}', tag='bias')
    a('v_and_b32 v14, 31, v1')
    a(f's_mov_b32 s76, {LDCH}')
    a('v_mul_lo_u32 v14, v14, s76')
    a('v_lshl_add_u32 v14, v15, 4, v14')
    a.wait_vm('bias')
    for i in range(2):
        for g in range(4):
            r = 96 + (i * 4 + g) * 2
            o = 32 + (i * 4 + g) * 4
            a(f'v_lshlrev_b32 v{o}, 16, v{r}')
            a(f'v_and_b32 v{o+1}, 0xffff0000, v{r}')
            a(f'v_lshlrev_b32 v{o+2}, 16, v{r+1}')
            a(f'v_and_b32 v{o+3}, 0xffff0000, v{r+1}')
    n = 0
    for jm in range(JM):
        a(f's_add_u32 s76, s75, {jm*32*LDCH}')
        for i in range(2):
            acc = 128 + (i * JM + jm) * 16
            t = 80 + (n % 2) * 8
            n += 1
            for g in range(4):
                for h in range(2):
                    r0 = acc + 4 * g + 2 * h
                    bo = 32 + (i * 4 + g) * 4 + 2 * h
                    d = t + 2 * g + h
                    a(f'v_cvt_pk_bf16_f32 v112, v{r0}, v{r0+1}')
                    a(f'v_lshlrev_b32 v113, 16, v112')
                    a(f'v_and_b32 v114, 0xffff0000, v112')
                    a(f'v_add_f32 v113, v113, v{bo}')
                    a(f'v_add_f32 v114, v114, v{bo+1}')
                    a(f'v_cvt_pk_bf16_f32 v112, v113, v114')
                    a(f'v_lshlrev_b32 v113, 16, v112')
                    a(f'v_and_b32 v114, 0xffff0000, v112')
                    a(f'v_max_f32 v113, 0, v113')
                    a(f'v_max_f32 v114, 0, v114')
                    a(f'v_mul_f32 v113, v113, v113')
                    a(f'v_mul_f32 v114, v114, v114')
                    a(f'v_cvt_pk_bf16_f32 v{d}, v113, v114')
            for k in (0, 2):
                b = t + 2 * k
                a(f'v_permlane32_swap_b32 v{b}, v{b+2}')
                a(f'v_permlane32_swap_b32 v{b+1}, v{b+3}')
                a(f'buffer_store_dwordx4 v[{b}:{b+3}], v14, s[52:55], s76 offen offset:{i*64 + k*16}')


def epilogue_part(a, JM=2):
    a('v_and_b32 v14, 31, v1')
    a('v_lshlrev_b32 v14, 10, v14')
    a('v_lshrrev_b32 v15, 5, v1')
    a('v_lshl_add_u32 v14, v15, 4, v14')
    n = 0
    for jm in range(JM):
        a(f's_add_u32 s76, s75, {jm*32*1024}')
        for i in range(2):
            acc = 128 + (i * JM + jm) * 16
            t = 80 + (n % 4) * 8
            n += 1
            for g in range(4):
                a(f'v_cvt_pk_bf16_f32 v{t+2*g}, v{acc+4*g}, v{acc+4*g+1}')
                a(f'v_cvt_pk_bf16_f32 v{t+2*g+1}, v{acc+4*g+2}, v{acc+4*g+3}')
            for k in (0, 2):
                b = t + 2 * k
                a(f'v_permlane32_swap_b32 v{b}, v{b+2}')
                a(f'v_permlane32_swap_b32 v{b+1}, v{b+3}')
                a(f'buffer_store_dwordx4 v[{b}:{b+3}], v14, s[52:55], s76 offen offset:{i*64 + k*16}')


def wave_allreduce_add(a, v, t):
    for off in (0x041F, 0x081F, 0x101F, 0x201F, 0x401F):
        a(f'ds_swizzle_b32 v{t}, v{v} offset:0x{off:04X}')
        a('s_waitcnt lgkmcnt(0)')
        a(f'v_add_f32 v{v}, v{v}, v{t}')
    a(f'v_mov_b32 v{t}, v{v}')
    a(f'v_mov_b32 v{t+1}, v{v}')
    a(f'v_permlane32_swap_b32 v{t}, v{t+1}')
    a(f'v_add_f32 v{v}, v{t}, v{t+1}')


def bf16_round(a, v, t):
    a(f'v_cvt_pk_bf16_f32 v{t}, v{v}, v{v}')
    a(f'v_lshlrev_b32 v{v}, 16, v{t}')


def layernorm_row(a):
    for i in range(4):
        a(f'v_lshlrev_b32 v{84+2*i}, 16, v{80+i}')
        a(f'v_and_b32 v{85+2*i}, 0xffff0000, v{80+i}')
    a('v_add_f32 v92, v84, v85')
    for i in range(2, 8):
        a(f'v_add_f32 v92, v92, v{84+i}')
    wave_allreduce_add(a, 92, 93)
    a('v_mul_f32 v92, 0x3b000000, v92')
    a('v_mov_b32 v95, 0')
    for i in range(8):
        a(f'v_sub_f32 v93, v{84+i}, v92')
        a('v_fmac_f32 v95, v93, v93')
    wave_allreduce_add(a, 95, 93)
    a('v_mul_f32 v95, 0x3b000000, v95')
    bf16_round(a, 92, 93)
    bf16_round(a, 95, 93)
    a('v_add_f32 v95, 0x3727c5ac, v95')
    bf16_round(a, 95, 93)
    a('v_sqrt_f32 v95, v95')
    bf16_round(a, 95, 93)
    a('v_rcp_f32 v95, v95')
    for i in range(8):
        a(f'v_sub_f32 v{84+i}, v{84+i}, v92')
    for i in range(4):
        a(f'v_cvt_pk_bf16_f32 v{80+i}, v{84+2*i}, v{85+2*i}')
    for i in range(4):
        a(f'v_lshlrev_b32 v{84+2*i}, 16, v{80+i}')
        a(f'v_and_b32 v{85+2*i}, 0xffff0000, v{80+i}')
    for i in range(8):
        a(f'v_mul_f32 v{84+i}, v{84+i}, v95')
    for i in range(4):
        a(f'v_cvt_pk_bf16_f32 v{80+i}, v{84+2*i}, v{85+2*i}')
    a('buffer_store_dwordx4 v[80:83], v19, s[60:63], 0 offen', tag='lnst')


def k0_ln(a):
    name = 'k0_ln_kernel'
    kernel_header(a, name)
    a.reset_counters()
    a('s_cmp_ge_u32 s2, 512')
    a('s_cbranch_scc1 K0_END')
    stamp(a)
    load_kernargs(a)
    a('v_and_b32 v1, 63, v0')
    a('v_lshrrev_b32 v2, 6, v0')
    a('s_lshl_b32 s3, s2, 2')
    a('v_add_u32 v2, s3, v2')
    a('v_lshlrev_b32 v2, 10, v2')
    a('v_lshl_add_u32 v19, v1, 4, v2')
    a('s_waitcnt lgkmcnt(0)')
    srd(a, 56, P_X, 2048 * 1024)
    srd(a, 60, P_WS, 2048 * 1024, WS_XN)
    a('buffer_load_dwordx4 v[80:83], v19, s[56:59], 0 offen', tag='lnld')
    a('s_lshl_b32 s3, s2, 8')
    a('v_add_u32 v3, s3, v0')
    a('v_lshlrev_b32 v3, 7, v3')
    start = 0
    for (ptr, nb) in ((P_CKV, 2 * MB), (P_WUK, 4 * MB), (P_WUV, 4 * MB), (P_WQ, 4 * MB), (P_W1, 512 * 3584)):
        srd(a, 44, ptr, nb)
        a(f'v_subrev_u32 v4, 0x{start:x}, v3')
        a('buffer_load_dword v5, v4, s[44:47], 0 offen', tag='pf')
        a('buffer_load_dword v5, v4, s[44:47], 0 offen offset:64', tag='pf')
        start += nb
    a.wait_vm('lnld')
    layernorm_row(a)
    if PROF:
        a('s_waitcnt vmcnt(0)')
        a('v_lshrrev_b32 v2, 6, v0')
        a('v_readfirstlane_b32 s64, v2')
    stamp(a)
    stamp_dump(a, 64)
    a.label('K0_END')
    a('s_endpgm')
    return name, kernel_desc(name, 96)


def k12_proj(a):
    name = 'k12_proj_kernel'
    kernel_header(a, name)
    a.reset_counters()
    a('s_cmp_ge_u32 s2, 256')
    a('s_cbranch_scc1 K1_END')
    stamp(a)
    load_kernargs(a)
    a('s_and_b32 s3, s2, 7')
    a('s_lshr_b32 s4, s2, 3')
    a('s_and_b32 s5, s4, 3')
    a('s_lshl_b32 s3, s3, 2')
    a('s_add_u32 s3, s3, s5')
    a('s_lshr_b32 s4, s4, 2')
    a('s_and_b32 s60, s2, 7')
    a('s_lshr_b32 s61, s2, 3')
    a('s_mul_i32 s60, s60, 23')
    a('s_add_u32 s60, s60, s61')
    a('s_and_b32 s61, s60, 7')
    a('s_lshr_b32 s60, s60, 3')
    a('s_waitcnt lgkmcnt(0)')
    srd(a, 44, P_CKV, 2048 * 1024)
    a('s_cmp_lt_u32 s3, 16')
    a(f's_cselect_b32 s48, s{P_WUK}, s{P_WUV}')
    a(f's_cselect_b32 s49, s{P_WUK+1}, s{P_WUV+1}')
    csel(a, 's5', f'0x{WS_K:x}', f'0x{WS_V:x}')
    a('s_and_b32 s49, s49, 0xffff')
    a(f's_mov_b32 s50, 0x{512*8192:x}')
    a('s_mov_b32 s51, 0x20000')
    a(f's_add_u32 s52, s{P_WS}, s5')
    a(f's_addc_u32 s53, s{P_WS+1}, 0')
    a('s_and_b32 s53, s53, 0xffff')
    a(f's_mov_b32 s54, 0x{16*MB:x}')
    a('s_mov_b32 s55, 0x20000')
    a('s_and_b32 s3, s3, 15')
    a('s_lshl_b32 s65, s4, 18')
    a('s_lshl_b32 s66, s3, 9')
    a('s_mov_b32 s67, 8192')
    a(f's_mov_b32 s68, {32*8192}')
    srd(a, 8, P_WS, 2048 * 1024, WS_XN)
    a('s_cmp_lt_u32 s60, 16')
    a(f's_cselect_b32 s12, s{P_WQ}, s{P_W1}')
    a(f's_cselect_b32 s13, s{P_WQ+1}, s{P_W1+1}')
    csel(a, 's14', f'0x{512*8192:x}', f'0x{512*3584:x}')
    csel(a, 's62', '8192', '3584')
    csel(a, 's63', f'{32*8192}', f'{32*3584}')
    csel(a, 's6', '0', '1')
    a('s_mov_b32 s15, 0x20000')
    a('s_and_b32 s13, s13, 0xffff')
    a('s_cmp_lt_u32 s2, 184')
    a('s_cselect_b32 s10, s10, 0')
    a('s_cselect_b32 s14, s14, 0')
    a('s_and_b32 s60, s60, 15')
    a('s_lshl_b32 s78, s61, 18')
    a('s_lshl_b32 s79, s60, 9')
    srd(a, 56, P_B1, 1792 * 2)
    gemm_setup(a, 256, 1024)
    w_voffsets(a, 256, 62, 20)
    PB = dict(act=8, w=12, s_act=78, s_w=79, s_wstep=63, vw=20)

    def qkv_offsets(sn, sm):
        a(f's_lshl_b32 s72, s{sn}, 8')
        a('s_lshl_b32 s73, s69, 6')
        a('s_add_u32 s72, s72, s73')
        a('s_lshr_b32 s73, s72, 7')
        a('s_lshl_b32 s75, s73, 19')
        a('s_and_b32 s73, s72, 127')
        a('s_lshl_b32 s73, s73, 1')
        a('s_add_u32 s75, s75, s73')
        a(f's_lshl_b32 s73, s{sm}, 16')
        a('s_add_u32 s75, s75, s73')
        a('s_lshl_b32 s73, s70, 15')
        a('s_add_u32 s75, s75, s73')

    later = []

    def epi_a():
        qkv_offsets(3, 4)
        xp_setup(a, 131072, 256)
        later.extend(xp_epilogue(a, 4, 256, pack_plain(a, 4), defer=True))
        a('s_cmp_ge_u32 s2, 184')
        a('s_cbranch_scc1 K1_TAILA')

    def extra(k):
        return [later[k]] if k < len(later) else []

    gemm_main(a, 256, [dict(nst=16, params=PA, mid_hook=epi_a), dict(nst=16, params=PB, extra=extra)])
    a('s_cmp_eq_u32 s6, 1')
    csel(a, 's5', f'0x{WS_CH:x}', f'0x{WS_Q:x}')
    csel(a, 's54', f'0x{CH_BYTES:x}', f'0x{16*MB:x}')
    a(f's_add_u32 s52, s{P_WS}, s5')
    a(f's_addc_u32 s53, s{P_WS+1}, 0')
    a('s_and_b32 s53, s53, 0xffff')
    a('s_cmp_eq_u32 s6, 1')
    a('s_cbranch_scc1 K2_FFN')
    qkv_offsets(60, 61)
    a('s_mov_b32 s77, 0x3e0293ee')
    for i in range(128):
        a(f'v_mul_f32 v{128+i}, s77, v{128+i}')
    xp_epilogue(a, 4, 256, pack_plain(a, 4))
    a('s_branch K1_PEND')
    a.label('K2_FFN')
    a('s_nop 15')
    a('s_lshl_b32 s72, s60, 8')
    a('s_lshl_b32 s73, s69, 6')
    a('s_add_u32 s72, s72, s73')
    a('s_lshl_b32 s77, s72, 1')
    a('s_lshl_b32 s73, s61, 8')
    a('s_lshl_b32 s75, s70, 7')
    a('s_add_u32 s73, s73, s75')
    a(f's_mul_i32 s75, s73, {LDCH}')
    a('s_add_u32 s75, s75, s77')
    a('s_add_u32 s75, s75, 8192')
    a.vm = []
    a.lg = []
    epilogue_ffn2(a)
    a.label('K1_PEND')
    if PROF:
        a('s_waitcnt vmcnt(0)')
    stamp(a)
    stamp_dump(a, 64)
    a.label('K1_END')
    a('s_endpgm')
    a.label('K1_TAILA')
    a('s_nop 15')
    for f in later:
        f()
    a('s_sub_u32 s3, s2, 184')
    a('s_lshl_b32 s3, s3, 9')
    a('v_add_u32 v3, s3, v0')
    a('v_lshlrev_b32 v3, 7, v3')
    srd(a, 44, P_WO, 4 * MB)
    srd(a, 48, P_W2, 1792 * 1024)
    a('buffer_load_dword v5, v3, s[44:47], 0 offen')
    a('buffer_load_dword v5, v3, s[44:47], 0 offen offset:64')
    a('buffer_load_dword v5, v3, s[48:51], 0 offen')
    a('buffer_load_dword v5, v3, s[48:51], 0 offen offset:64')
    a('s_waitcnt vmcnt(0)')
    a('s_branch K1_PEND')
    return name, kernel_desc(name, 256)


def k4_out(a):
    name = 'k4_out_kernel'
    kernel_header(a, name)
    a.reset_counters()
    a('s_cmp_ge_u32 s2, 256')
    a('s_cbranch_scc1 K4_END')
    stamp(a)
    load_kernargs(a)
    a('s_and_b32 s3, s2, 7')
    a('s_lshr_b32 s4, s2, 3')
    a('s_and_b32 s5, s4, 3')
    a('s_lshr_b32 s4, s4, 2')
    a('s_waitcnt lgkmcnt(0)')
    srd(a, 44, P_WS, CH_BYTES, WS_CH)
    srd(a, 52, P_WS, NSPLIT * 2 * MB, WS_PART)
    a('s_and_b32 s27, s27, 0xffff')
    a('s_and_b32 s35, s35, 0xffff')
    a('s_mov_b32 s51, 0x20000')
    a('s_mul_i32 s6, s3, 736')
    a(f's_mul_i32 s65, s4, {256*LDCH}')
    a('s_lshl_b32 s72, s6, 1')
    a('s_add_u32 s65, s65, s72')
    a('s_lshl_b32 s7, s5, 8')
    a('s_mov_b32 s67, 1024')
    a('s_mov_b32 s68, 0')
    gemm_setup(a, 128, LDCH)

    def whook(s):
        a('s_cmp_lt_u32 s6, 4096')
        a(f's_cselect_b32 s48, s{P_WO}, s{P_W2}')
        a(f's_cselect_b32 s49, s{P_WO+1}, s{P_W2+1}')
        csel(a, 's50', f'0x{4096*1024:x}', f'0x{1792*1024:x}')
        csel(a, 's72', f'0', f'4096')
        a('s_sub_u32 s72, s6, s72')
        a('s_lshl_b32 s66, s72, 10')
        a('s_add_u32 s66, s66, s7')
        a('s_add_u32 s6, s6, 32')
    gemm_main(a, 128, [dict(nst=23, params=PA, w_stage_hook=whook)])
    a('s_lshl_b32 s75, s3, 21')
    a('s_lshl_b32 s72, s4, 18')
    a('s_add_u32 s75, s75, s72')
    a('s_lshl_b32 s72, s70, 16')
    a('s_add_u32 s75, s75, s72')
    a('s_lshl_b32 s72, s5, 8')
    a('s_add_u32 s75, s75, s72')
    a('s_lshl_b32 s72, s69, 7')
    a('s_add_u32 s75, s75, s72')
    xp_setup(a, 98304, 1024)
    xp_epilogue(a, 2, 1024, pack_plain(a, 2))
    a.label('K4_PEND')
    if PROF:
        a('s_waitcnt vmcnt(0)')
    stamp(a)
    stamp_dump(a, 64)
    a.label('K4_END')
    a('s_endpgm')
    return name, kernel_desc(name, 192)


def k5_red(a):
    name = 'k5_red_kernel'
    kernel_header(a, name)
    a.reset_counters()
    a('s_cmp_ge_u32 s2, 512')
    a('s_cbranch_scc1 K5_END')
    stamp(a)
    load_kernargs(a)
    a('s_lshl_b32 s3, s2, 8')
    a('v_add_u32 v1, s3, v0')
    a('v_lshlrev_b32 v2, 4, v1')
    a('v_lshlrev_b32 v3, 5, v1')
    a('v_and_b32 v4, 63, v1')
    a('v_lshlrev_b32 v4, 4, v4')
    a('s_waitcnt lgkmcnt(0)')
    srd(a, 44, P_WS, NSPLIT * 2 * MB, WS_PART)
    srd(a, 48, P_X, 2 * MB)
    srd(a, 52, P_OUT, 2 * MB)
    srd(a, 56, P_B2, 1024)
    a('buffer_load_dwordx4 v[8:11], v2, s[48:51], 0 offen', tag='x')
    a('buffer_load_dwordx4 v[12:15], v4, s[56:59], 0 offen', tag='x')
    for s in range(NSPLIT):
        a(f's_mov_b32 s4, 0x{s*2*MB:x}')
        a(f'buffer_load_dwordx4 v[{16+s*4}:{19+s*4}], v2, s[44:47], s4 offen', tag=('p', s))
    a.wait_vm('x')
    for i in range(4):
        a(f'v_lshlrev_b32 v{96+2*i}, 16, v{8+i}')
        a(f'v_and_b32 v{97+2*i}, 0xffff0000, v{8+i}')
        a(f'v_lshlrev_b32 v{104+2*i}, 16, v{12+i}')
        a(f'v_and_b32 v{105+2*i}, 0xffff0000, v{12+i}')
    for i in range(8):
        a(f'v_add_f32 v{96+i}, v{96+i}, v{104+i}')
    for s in range(NSPLIT):
        a.wait_vm(('p', s))
        for i in range(4):
            a(f'v_lshlrev_b32 v104, 16, v{16+s*4+i}')
            a(f'v_and_b32 v105, 0xffff0000, v{16+s*4+i}')
            a(f'v_add_f32 v{96+2*i}, v{96+2*i}, v104')
            a(f'v_add_f32 v{97+2*i}, v{97+2*i}, v105')
    for i in range(4):
        a(f'v_cvt_pk_bf16_f32 v{8+i}, v{96+2*i}, v{97+2*i}')
    a('buffer_store_dwordx4 v[8:11], v2, s[52:55], 0 offen')
    if PROF:
        a('s_waitcnt vmcnt(0)')
        a('v_lshrrev_b32 v2, 6, v0')
        a('v_readfirstlane_b32 s64, v2')
    stamp(a)
    stamp_dump(a, 64)
    a.label('K5_END')
    a('s_endpgm')
    return name, kernel_desc(name, 112)


def main():
    from attn import k3_attn
    a = Asm()
    descs = []
    launches = []
    n, d = k0_ln(a); descs.append(d); launches.append((n, 512, 256, 0))
    n, d = k12_proj(a); descs.append(d); launches.append((n, 256, 512, 163840))
    n, d = k3_attn(a); descs.append(d); launches.append((n, 256, 512, 163840))
    n, d = k4_out(a); descs.append(d); launches.append((n, 256, 512, 131072))
    n, d = k5_red(a); descs.append(d); launches.append((n, 512, 256, 0))
    hdr = open(f'cdna_kernels/{NAME}.s.ref').read().split('; @launch')[0]
    out = hdr
    for (n, g, b, l) in launches:
        out += f'; @launch kernel={n} grid=({g},1,1) block=({b},1,1) lds={l}\n'
    out += '.amdgcn_target "amdgcn-amd-amdhsa--gfx950"\n'
    out += a.finalize()
    out += ''.join(descs)
    path = sys.argv[1] if len(sys.argv) > 1 else f'cdna_kernels/{NAME}.s'
    open(path, 'w').write(out)
    print('wrote', path, len(out), 'bytes')


if __name__ == '__main__':
    main()
```

```python
import sys, os
sys.path.insert(0, os.path.dirname(__file__))
from asmlib import Asm

NAME = 'parallel_sum__compressed_kv_cla__dense_activation_squared_relu__prompt'

MB = 1 << 20
WS_XN = 0
WS_Q = 16 * MB
WS_K = 32 * MB
WS_V = 48 * MB
WS_CH = 64 * MB
WS_PART = 96 * MB
LDCH = 5888 * 2
CH_BYTES = 2048 * LDCH
NSPLIT = 8

P_X, P_CKV, P_WQ, P_WUK, P_WUV, P_WO, P_BX, P_W1 = 16, 18, 20, 22, 24, 26, 28, 30
P_B1, P_W2, P_B2, P_OUT, P_DBG, P_WS = 32, 34, 36, 38, 40, 42


def load_kernargs(a):
    a('s_load_dwordx16 s[16:31], s[0:1], 0')
    a('s_load_dwordx8 s[32:39], s[0:1], 64')
    a('s_load_dwordx4 s[40:43], s[0:1], 96')


def srd(a, d, ptr, nbytes, off=0):
    if off:
        a(f's_add_u32 s{d}, s{ptr}, 0x{off:x}')
        a(f's_addc_u32 s{d+1}, s{ptr+1}, 0')
        a(f's_and_b32 s{d+1}, s{d+1}, 0xffff')
    else:
        a(f's_mov_b32 s{d}, s{ptr}')
        a(f's_and_b32 s{d+1}, s{ptr+1}, 0xffff')
    a(f's_mov_b32 s{d+2}, 0x{nbytes:x}')
    a(f's_mov_b32 s{d+3}, 0x20000')


def csel(a, dst, x, y):
    a(f's_mov_b32 s101, {y}')
    a(f's_cselect_b32 {dst}, {x}, s101')


PROF = os.environ.get('PROF', '0') == '1'
STMOD = os.environ.get('STMOD', 'sc1')
NSTAMP = [0]


def stamp(a):
    if not PROF:
        return
    i = NSTAMP[0]
    NSTAMP[0] += 1
    assert i < 5
    if i == 0:
        a('s_memrealtime s[96:97]')
    a(f's_memtime s[{86+2*i}:{87+2*i}]')


def stamp_dump(a, wave_sgpr):
    if not PROF:
        return
    n = NSTAMP[0]
    NSTAMP[0] = 0
    a('s_memrealtime s[98:99]')
    a('s_waitcnt lgkmcnt(0) vmcnt(0)')
    a(f's_and_b32 s100, s{wave_sgpr}, 3')
    a('s_cmp_eq_u32 s100, 0')
    lab = f'PD{id(a)}_{len(a.lines)}'
    a(f's_cbranch_scc0 {lab}')
    a('s_and_b32 s100, s2, 63')
    a('s_cmp_eq_u32 s100, 0')
    a(f's_cbranch_scc0 {lab}')
    srd(a, 60, P_DBG, 256)
    a('s_lshr_b32 s100, s2, 6')
    a('s_lshl_b32 s100, s100, 6')
    a(f's_lshl_b32 s101, s{wave_sgpr}, 3')
    a('s_add_u32 s100, s100, s101')
    a('v_mov_b32 v1, 0')
    for i in range(n):
        a(f'v_mov_b32 v2, s{86+2*i}')
        a(f'buffer_store_dword v2, v1, s[60:63], s100 offen offset:{4*i}')
    a('v_mov_b32 v2, s96')
    a(f'buffer_store_dword v2, v1, s[60:63], s100 offen offset:24')
    a('v_mov_b32 v2, s98')
    a(f'buffer_store_dword v2, v1, s[60:63], s100 offen offset:28')
    a.label(lab)


def kernel_header(a, name):
    a.raw(f'.text\n.globl {name}\n.p2align 8\n.type {name},@function\n{name}:')


def kernel_desc(name, vgpr, sgpr=102):
    acc = (vgpr + 3) // 4 * 4
    return f'''.section .rodata,"a"
.p2align 6
.amdhsa_kernel {name}
  .amdhsa_next_free_vgpr {vgpr}
  .amdhsa_next_free_sgpr {sgpr}
  .amdhsa_accum_offset {acc}
  .amdhsa_group_segment_fixed_size 0
  .amdhsa_kernarg_size 112
  .amdhsa_user_sgpr_count 2
  .amdhsa_user_sgpr_kernarg_segment_ptr 1
  .amdhsa_system_sgpr_workgroup_id_x 1
.end_amdhsa_kernel
'''


def w_voffsets(a, TN, sld, vd):
    if TN == 256:
        a('v_lshrrev_b32 v14, 5, v1')
        a('s_lshl_b32 s72, s64, 2')
        a('v_add_u32 v15, s72, v14')
        a(f'v_mul_lo_u32 v15, v15, s{sld}')
        a('v_bfe_u32 v16, v1, 2, 3')
        a('v_and_b32 v17, 3, v1')
        a('v_xor_b32 v18, v16, v14')
        a('v_lshlrev_b32 v18, 6, v18')
        a('v_lshl_add_u32 v18, v17, 4, v18')
        a(f'v_add_u32 v{vd}, v15, v18')
        a('v_xor_b32 v18, 2, v14')
        a('v_xor_b32 v18, v16, v18')
        a('v_lshlrev_b32 v18, 6, v18')
        a('v_lshl_add_u32 v18, v17, 4, v18')
        a(f'v_add_u32 v{vd+1}, v15, v18')
        a(f's_lshl_b32 s72, s{sld}, 1')
        a(f'v_add_u32 v{vd+1}, s72, v{vd+1}')
    else:
        a('v_lshrrev_b32 v14, 4, v1')
        a('s_lshl_b32 s72, s64, 2')
        a('v_add_u32 v15, s72, v14')
        a(f'v_mul_lo_u32 v15, v15, s{sld}')
        a('v_bfe_u32 v16, v1, 2, 2')
        a('v_and_b32 v17, 3, v1')
        a('v_xor_b32 v18, v16, v14')
        a('v_lshlrev_b32 v18, 6, v18')
        a('v_lshl_add_u32 v18, v17, 4, v18')
        a(f'v_add_u32 v{vd}, v15, v18')
        a(f'v_mov_b32 v{vd+1}, v{vd}')


def gemm_setup(a, TN, lda):
    WN = TN // 64
    WM = 8 // WN
    JM = (256 // WM) // 32
    SS = 16384 + TN * 64
    a('v_and_b32 v1, 63, v0')
    a('v_lshrrev_b32 v14, 6, v0')
    a('v_readfirstlane_b32 s64, v14')
    a(f's_and_b32 s69, s64, {WN-1}')
    a(f's_lshr_b32 s70, s64, {WN.bit_length()-1}')
    a('v_lshrrev_b32 v14, 2, v1')
    a('v_lshlrev_b32 v15, 5, v0')
    a('s_lshl_b32 s72, s64, 5')
    a('v_add_u32 v14, s72, v14')
    a(f's_mov_b32 s73, {lda}')
    a('v_mul_lo_u32 v14, v14, s73')
    a('v_lshrrev_b32 v15, 4, v1')
    a('v_and_b32 v16, 3, v1')
    a('v_xor_b32 v15, v15, v16')
    a('v_lshl_add_u32 v2, v15, 4, v14')
    a(f'v_add_u32 v3, {16*lda}, v2')
    w_voffsets(a, TN, 67, 4)
    a('v_and_b32 v14, 31, v1')
    a(f's_mul_i32 s72, s70, {(256//WM)*64}')
    a('v_lshlrev_b32 v14, 6, v14')
    a('v_add_u32 v14, s72, v14')
    a('v_lshrrev_b32 v15, 5, v1')
    a('v_bfe_u32 v16, v1, 2, 2')
    a('v_xor_b32 v15, v15, v16')
    a('v_lshl_add_u32 v6, v15, 4, v14')
    a('v_xor_b32 v7, 32, v6')
    a(f'v_add_u32 v8, {2*SS}, v6')
    a(f'v_add_u32 v9, {2*SS}, v7')
    RS = TN * 2
    a('v_lshrrev_b32 v14, 5, v1')
    a('v_lshlrev_b32 v14, 3, v14')
    a('v_bfe_u32 v15, v1, 2, 2')
    a('v_add_u32 v14, v14, v15')
    a(f'v_mul_u32_u24 v14, {RS}, v14')
    a('s_lshl_b32 s72, s69, 1')
    a('v_xor_b32 v15, s72, v15')
    a('v_lshl_add_u32 v14, v15, 6, v14')
    a('v_bfe_u32 v15, v1, 4, 1')
    a('v_lshl_add_u32 v14, v15, 5, v14')
    a('v_and_b32 v15, 3, v1')
    a('v_lshl_add_u32 v14, v15, 3, v14')
    a('v_add_u32 v10, 16384, v14')
    a('v_xor_b32 v11, 64, v10')
    a(f'v_add_u32 v12, {2*SS}, v10')
    a(f'v_add_u32 v13, {2*SS}, v11')
    a('s_lshl_b32 s71, s64, 11')
    if TN == 256:
        a('s_mov_b32 s74, s71')
    else:
        a('s_lshl_b32 s74, s64, 10')


PA = dict(act=44, w=48, s_act=65, s_w=66, s_wstep=68, vw=4)


def gemm_main(a, TN, tiles, pre_loop_hook=None):
    WN = TN // 64
    WM = 8 // WN
    JM = (256 // WM) // 32
    SS = 16384 + TN * 64
    RS = TN * 2
    stages = []
    for ti, t in enumerate(tiles):
        for k in range(t['nst']):
            stages.append((ti, k))
    nst = len(stages)

    def dma_list(s):
        ti, k = stages[s]
        P = tiles[ti]['params']
        hook = tiles[ti].get('w_stage_hook')
        buf = s % 4
        base = buf * SS
        L = []
        for t in range(2):
            def f(t=t):
                a(f's_add_u32 m0, s71, {base + t*1024}')
                a(f'buffer_load_dwordx4 v{2+t}, s[{P["act"]}:{P["act"]+3}], s{P["s_act"]} offen lds', tag=('st', s))
                if t == 1:
                    a(f's_add_u32 s{P["s_act"]}, s{P["s_act"]}, 64')
            L.append(f)
        nw = 2 if TN == 256 else 1
        for t in range(nw):
            def f(t=t):
                if t == 0 and hook:
                    hook(k)
                a(f's_add_u32 m0, s74, {base + 16384 + t*1024}')
                a(f'buffer_load_dwordx4 v{P["vw"]+t}, s[{P["w"]}:{P["w"]+3}], s{P["s_w"]} offen lds', tag=('st', s))
                if t == nw - 1:
                    a(f's_add_u32 s{P["s_w"]}, s{P["s_w"]}, s{P["s_wstep"]}')
            L.append(f)
        return L

    def read_list(s, ks, b):
        buf = s % 4
        win = buf // 2
        so = (buf % 2) * SS
        L = []
        for i in range(2):
            for j in range(2):
                r = 32 + b * 8 + i * 4 + j * 2
                L.append(lambda r=r, i=i, j=j: a(f'ds_read_b64_tr_b16 v[{r}:{r+1}], v{10 + win*2 + i} offset:{so + (16*ks + 4*j)*RS}', tag=('fr', s, ks)))
        for jm in range(JM):
            r = 48 + b * 16 + jm * 4
            L.append(lambda r=r, jm=jm: a(f'ds_read_b128 v[{r}:{r+3}], v{6 + win*2 + ks} offset:{so + jm*2048}', tag=('fr', s, ks)))
        return L

    def mfmas(b, first, fill):
        n = 2 * JM
        per = (len(fill) + n - 1) // n if fill else 0
        k = 0
        for i in range(2):
            for jm in range(JM):
                acc = 128 + (i * JM + jm) * 16
                c = '0' if first else f'v[{acc}:{acc+15}]'
                a(f'v_mfma_f32_32x32x16_bf16 v[{acc}:{acc+15}], v[{32+b*8+i*4}:{32+b*8+i*4+3}], v[{48+b*16+jm*4}:{48+b*16+jm*4+3}], {c}')
                for _ in range(per):
                    if k < len(fill):
                        fill[k]()
                        k += 1
        while k < len(fill):
            fill[k]()
            k += 1

    for s in range(min(3, nst)):
        for f in dma_list(s):
            f()
    if pre_loop_hook:
        pre_loop_hook()
    a.wait_vm(('st', 0))
    a('s_barrier')
    stamp(a)
    for f in read_list(0, 0, 0):
        f()
    for s in range(nst):
        ti, k = stages[s]
        a.wait_lg(('fr', s, 0))
        xf = tiles[ti]['extra'](k) if tiles[ti].get('extra') else []
        mfmas(0, k == 0, read_list(s, 1, 1) + xf)
        fill = []
        if s + 1 < nst:
            a.wait_vm(('st', s + 1))
            a('s_barrier')
            fill = read_list(s + 1, 0, 0)
            if s + 3 < nst:
                fill = fill + dma_list(s + 3)
        a.wait_lg(('fr', s, 1))
        mfmas(1, False, fill)
        if k == tiles[ti]['nst'] - 1:
            stamp(a)
            if tiles[ti].get('mid_hook'):
                tiles[ti]['mid_hook']()


def epi_bf16_store(a, JM, sbase, rowstep, vofs, src_of):
    pass


def epilogue_qkv(a, JM=4, scale=False):
    if scale:
        a('s_mov_b32 s77, 0x3e0293ee')
        for i in range(JM * 32):
            a(f'v_mul_f32 v{128+i}, s77, v{128+i}')
    a('v_and_b32 v14, 31, v1')
    a('v_lshlrev_b32 v14, 8, v14')
    a('v_lshrrev_b32 v15, 5, v1')
    a('v_lshl_add_u32 v14, v15, 4, v14')
    n = 0
    for jm in range(JM):
        a(f's_add_u32 s76, s75, {jm*32*256}')
        for i in range(2):
            acc = 128 + (i * JM + jm) * 16
            t = 80 + (n % 4) * 8
            n += 1
            for g in range(4):
                a(f'v_cvt_pk_bf16_f32 v{t+2*g}, v{acc+4*g}, v{acc+4*g+1}')
                a(f'v_cvt_pk_bf16_f32 v{t+2*g+1}, v{acc+4*g+2}, v{acc+4*g+3}')
            for k in (0, 2):
                b = t + 2 * k
                a(f'v_permlane32_swap_b32 v{b}, v{b+2}')
                a(f'v_permlane32_swap_b32 v{b+1}, v{b+3}')
                a(f'buffer_store_dwordx4 v[{b}:{b+3}], v14, s[52:55], s76 offen offset:{i*64 + k*16}')


def xp_setup(a, lds_base, rs, vw=22, vr=26, vs=14):
    a('s_lshl_b32 s72, s64, 12')
    a(f's_add_u32 s72, s72, {lds_base}')
    a('v_and_b32 v15, 31, v1')
    a('v_lshrrev_b32 v16, 5, v1')
    a('v_and_b32 v17, 7, v1')
    a('v_xor_b32 v16, v16, v17')
    a('v_lshlrev_b32 v15, 7, v15')
    a(f'v_lshl_add_u32 v{vw}, v16, 4, v15')
    a(f'v_add_u32 v{vw}, s72, v{vw}')
    for c in range(1, 4):
        a(f'v_xor_b32 v{vw+c}, {32*c}, v{vw}')
    a('v_lshrrev_b32 v15, 3, v1')
    a('v_xor_b32 v16, v15, v17')
    a('v_lshlrev_b32 v18, 7, v15')
    a(f'v_lshl_add_u32 v{vr}, v16, 4, v18')
    a(f'v_add_u32 v{vr}, s72, v{vr}')
    a(f's_mov_b32 s72, {rs}')
    a(f'v_mul_lo_u32 v{vs}, v15, s72')
    a(f'v_lshl_add_u32 v{vs}, v17, 4, v{vs}')


def xp_epilogue(a, JM, rs, pack, defer=False, srd_=52, vw=22, vr=26, vs=14):
    later = []
    pend = []

    def mk(b, jm, q):
        def f():
            a(f's_add_u32 s76, s75, {(jm*32 + q*8)*rs}')
            a(f'buffer_store_dwordx4 v[{b}:{b+3}], v{vs}, s[{srd_}:{srd_+3}], s76 offen {STMOD}')
        return f

    for jm in range(JM):
        for i in range(2):
            t = pack(i, jm)
            for k in (0, 2):
                b = t + 2 * k
                a(f'v_permlane32_swap_b32 v{b}, v{b+2}')
                a(f'v_permlane32_swap_b32 v{b+1}, v{b+3}')
                a(f'ds_write_b128 v{vw + i*2 + k//2}, v[{b}:{b+3}]', tag=('xw', jm))
        cur = []
        for q in range(4):
            if jm == 0:
                b = 128 + (q // 2) * JM * 16 + 8 + (q % 2) * 4
            else:
                b = 80 + (jm - 1) * 16 + q * 4
            a(f'ds_read_b128 v[{b}:{b+3}], v{vr} offset:{q*1024}', tag=('xr', jm))
            cur.append(mk(b, jm, q))
        if pend:
            a.wait_lg(('xr', jm - 1))
            for f in pend:
                f()
            pend = []
        if defer and jm >= 1:
            later.extend(cur)
        else:
            pend = cur
    a.wait_lg(('xr', JM - 1))
    for f in pend:
        f()
    return later


def pack_plain(a, JM):
    def pack(i, jm):
        acc = 128 + (i * JM + jm) * 16
        for g in range(4):
            a(f'v_cvt_pk_bf16_f32 v{acc+2*g}, v{acc+4*g}, v{acc+4*g+1}')
            a(f'v_cvt_pk_bf16_f32 v{acc+2*g+1}, v{acc+4*g+2}, v{acc+4*g+3}')
        return acc
    return pack


def epilogue_ffn2(a, JM=4):
    a('v_lshrrev_b32 v15, 5, v1')
    a('v_lshlrev_b32 v16, 3, v15')
    for i in range(2):
        for g in range(4):
            r = 64 + (i * 4 + g) * 2
            a(f'buffer_load_dwordx2 v[{r}:{r+1}], v16, s[56:59], s77 offen offset:{i*64 + g*16}', tag='bias')
    xp_setup(a, 131072, LDCH)
    a.wait_vm('bias')
    for i in range(2):
        for g in range(4):
            r = 64 + (i * 4 + g) * 2
            o = 32 + (i * 4 + g) * 4
            a(f'v_lshlrev_b32 v{o}, 16, v{r}')
            a(f'v_and_b32 v{o+1}, 0xffff0000, v{r}')
            a(f'v_lshlrev_b32 v{o+2}, 16, v{r+1}')
            a(f'v_and_b32 v{o+3}, 0xffff0000, v{r+1}')

    def pack(i, jm):
        acc = 128 + (i * JM + jm) * 16
        for g in range(4):
            for h in range(2):
                r0 = acc + 4 * g + 2 * h
                bo = 32 + (i * 4 + g) * 4 + 2 * h
                d = acc + 2 * g + h
                x = 27 + 2 * h
                a(f'v_cvt_pk_bf16_f32 v{x}, v{r0}, v{r0+1}')
                a(f'v_and_b32 v{x+1}, 0xffff0000, v{x}')
                a(f'v_lshlrev_b32 v{x}, 16, v{x}')
                a(f'v_add_f32 v{x}, v{x}, v{bo}')
                a(f'v_add_f32 v{x+1}, v{x+1}, v{bo+1}')
                a(f'v_cvt_pk_bf16_f32 v{x}, v{x}, v{x+1}')
                a(f'v_and_b32 v{x+1}, 0xffff0000, v{x}')
                a(f'v_lshlrev_b32 v{x}, 16, v{x}')
                a(f'v_max_f32 v{x}, 0, v{x}')
                a(f'v_max_f32 v{x+1}, 0, v{x+1}')
                a(f'v_mul_f32 v{x}, v{x}, v{x}')
                a(f'v_mul_f32 v{x+1}, v{x+1}, v{x+1}')
                a(f'v_cvt_pk_bf16_f32 v{d}, v{x}, v{x+1}')
        return acc
    xp_epilogue(a, JM, LDCH, pack)


def epilogue_ffn(a, JM=4):
    a('v_lshrrev_b32 v15, 5, v1')
    a('v_lshlrev_b32 v16, 3, v15')
    for i in range(2):
        for g in range(4):
            r = 16 + 0
    for i in range(2):
        for g in range(4):
            r = 96 + (i * 4 + g) * 2
            a(f'buffer_load_dwordx2 v[{r}:{r+1}], v16, s[56:59], s77 offen offset:{i*64 + g*16}', tag='bias')
    a('v_and_b32 v14, 31, v1')
    a(f's_mov_b32 s76, {LDCH}')
    a('v_mul_lo_u32 v14, v14, s76')
    a('v_lshl_add_u32 v14, v15, 4, v14')
    a.wait_vm('bias')
    for i in range(2):
        for g in range(4):
            r = 96 + (i * 4 + g) * 2
            o = 32 + (i * 4 + g) * 4
            a(f'v_lshlrev_b32 v{o}, 16, v{r}')
            a(f'v_and_b32 v{o+1}, 0xffff0000, v{r}')
            a(f'v_lshlrev_b32 v{o+2}, 16, v{r+1}')
            a(f'v_and_b32 v{o+3}, 0xffff0000, v{r+1}')
    n = 0
    for jm in range(JM):
        a(f's_add_u32 s76, s75, {jm*32*LDCH}')
        for i in range(2):
            acc = 128 + (i * JM + jm) * 16
            t = 80 + (n % 2) * 8
            n += 1
            for g in range(4):
                for h in range(2):
                    r0 = acc + 4 * g + 2 * h
                    bo = 32 + (i * 4 + g) * 4 + 2 * h
                    d = t + 2 * g + h
                    a(f'v_cvt_pk_bf16_f32 v112, v{r0}, v{r0+1}')
                    a(f'v_lshlrev_b32 v113, 16, v112')
                    a(f'v_and_b32 v114, 0xffff0000, v112')
                    a(f'v_add_f32 v113, v113, v{bo}')
                    a(f'v_add_f32 v114, v114, v{bo+1}')
                    a(f'v_cvt_pk_bf16_f32 v112, v113, v114')
                    a(f'v_lshlrev_b32 v113, 16, v112')
                    a(f'v_and_b32 v114, 0xffff0000, v112')
                    a(f'v_max_f32 v113, 0, v113')
                    a(f'v_max_f32 v114, 0, v114')
                    a(f'v_mul_f32 v113, v113, v113')
                    a(f'v_mul_f32 v114, v114, v114')
                    a(f'v_cvt_pk_bf16_f32 v{d}, v113, v114')
            for k in (0, 2):
                b = t + 2 * k
                a(f'v_permlane32_swap_b32 v{b}, v{b+2}')
                a(f'v_permlane32_swap_b32 v{b+1}, v{b+3}')
                a(f'buffer_store_dwordx4 v[{b}:{b+3}], v14, s[52:55], s76 offen offset:{i*64 + k*16}')


def epilogue_part(a, JM=2):
    a('v_and_b32 v14, 31, v1')
    a('v_lshlrev_b32 v14, 10, v14')
    a('v_lshrrev_b32 v15, 5, v1')
    a('v_lshl_add_u32 v14, v15, 4, v14')
    n = 0
    for jm in range(JM):
        a(f's_add_u32 s76, s75, {jm*32*1024}')
        for i in range(2):
            acc = 128 + (i * JM + jm) * 16
            t = 80 + (n % 4) * 8
            n += 1
            for g in range(4):
                a(f'v_cvt_pk_bf16_f32 v{t+2*g}, v{acc+4*g}, v{acc+4*g+1}')
                a(f'v_cvt_pk_bf16_f32 v{t+2*g+1}, v{acc+4*g+2}, v{acc+4*g+3}')
            for k in (0, 2):
                b = t + 2 * k
                a(f'v_permlane32_swap_b32 v{b}, v{b+2}')
                a(f'v_permlane32_swap_b32 v{b+1}, v{b+3}')
                a(f'buffer_store_dwordx4 v[{b}:{b+3}], v14, s[52:55], s76 offen offset:{i*64 + k*16}')


def wave_allreduce_add(a, v, t):
    for off in (0x041F, 0x081F, 0x101F, 0x201F, 0x401F):
        a(f'ds_swizzle_b32 v{t}, v{v} offset:0x{off:04X}')
        a('s_waitcnt lgkmcnt(0)')
        a(f'v_add_f32 v{v}, v{v}, v{t}')
    a(f'v_mov_b32 v{t}, v{v}')
    a(f'v_mov_b32 v{t+1}, v{v}')
    a(f'v_permlane32_swap_b32 v{t}, v{t+1}')
    a(f'v_add_f32 v{v}, v{t}, v{t+1}')


def bf16_round(a, v, t):
    a(f'v_cvt_pk_bf16_f32 v{t}, v{v}, v{v}')
    a(f'v_lshlrev_b32 v{v}, 16, v{t}')


def layernorm_row(a):
    for i in range(4):
        a(f'v_lshlrev_b32 v{84+2*i}, 16, v{80+i}')
        a(f'v_and_b32 v{85+2*i}, 0xffff0000, v{80+i}')
    a('v_add_f32 v92, v84, v85')
    for i in range(2, 8):
        a(f'v_add_f32 v92, v92, v{84+i}')
    wave_allreduce_add(a, 92, 93)
    a('v_mul_f32 v92, 0x3b000000, v92')
    a('v_mov_b32 v95, 0')
    for i in range(8):
        a(f'v_sub_f32 v93, v{84+i}, v92')
        a('v_fmac_f32 v95, v93, v93')
    wave_allreduce_add(a, 95, 93)
    a('v_mul_f32 v95, 0x3b000000, v95')
    bf16_round(a, 92, 93)
    bf16_round(a, 95, 93)
    a('v_add_f32 v95, 0x3727c5ac, v95')
    bf16_round(a, 95, 93)
    a('v_sqrt_f32 v95, v95')
    bf16_round(a, 95, 93)
    a('v_rcp_f32 v95, v95')
    for i in range(8):
        a(f'v_sub_f32 v{84+i}, v{84+i}, v92')
    for i in range(4):
        a(f'v_cvt_pk_bf16_f32 v{80+i}, v{84+2*i}, v{85+2*i}')
    for i in range(4):
        a(f'v_lshlrev_b32 v{84+2*i}, 16, v{80+i}')
        a(f'v_and_b32 v{85+2*i}, 0xffff0000, v{80+i}')
    for i in range(8):
        a(f'v_mul_f32 v{84+i}, v{84+i}, v95')
    for i in range(4):
        a(f'v_cvt_pk_bf16_f32 v{80+i}, v{84+2*i}, v{85+2*i}')
    a(f'buffer_store_dwordx4 v[80:83], v19, s[60:63], 0 offen {STMOD}', tag='lnst')


def k0_ln(a):
    name = 'k0_ln_kernel'
    kernel_header(a, name)
    a.reset_counters()
    a('s_cmp_ge_u32 s2, 512')
    a('s_cbranch_scc1 K0_END')
    stamp(a)
    load_kernargs(a)
    a('v_and_b32 v1, 63, v0')
    a('v_lshrrev_b32 v2, 6, v0')
    a('s_lshl_b32 s3, s2, 2')
    a('v_add_u32 v2, s3, v2')
    a('v_lshlrev_b32 v2, 10, v2')
    a('v_lshl_add_u32 v19, v1, 4, v2')
    a('s_waitcnt lgkmcnt(0)')
    srd(a, 56, P_X, 2048 * 1024)
    srd(a, 60, P_WS, 2048 * 1024, WS_XN)
    a('buffer_load_dwordx4 v[80:83], v19, s[56:59], 0 offen', tag='lnld')
    a('s_lshl_b32 s3, s2, 8')
    a('v_add_u32 v3, s3, v0')
    a('v_lshlrev_b32 v3, 7, v3')
    start = 0
    for (ptr, nb) in ((P_CKV, 2 * MB), (P_WUK, 4 * MB), (P_WUV, 4 * MB), (P_WQ, 4 * MB), (P_W1, 512 * 3584)):
        srd(a, 44, ptr, nb)
        a(f'v_subrev_u32 v4, 0x{start:x}, v3')
        a('buffer_load_dword v5, v4, s[44:47], 0 offen', tag='pf')
        a('buffer_load_dword v5, v4, s[44:47], 0 offen offset:64', tag='pf')
        start += nb
    a.wait_vm('lnld')
    layernorm_row(a)
    if PROF:
        a('s_waitcnt vmcnt(0)')
        a('v_lshrrev_b32 v2, 6, v0')
        a('v_readfirstlane_b32 s64, v2')
    stamp(a)
    stamp_dump(a, 64)
    a.label('K0_END')
    a('s_endpgm')
    return name, kernel_desc(name, 96)


def k12_proj(a):
    name = 'k12_proj_kernel'
    kernel_header(a, name)
    a.reset_counters()
    a('s_cmp_ge_u32 s2, 256')
    a('s_cbranch_scc1 K1_END')
    stamp(a)
    load_kernargs(a)
    a('s_and_b32 s3, s2, 7')
    a('s_lshr_b32 s4, s2, 3')
    a('s_and_b32 s5, s4, 3')
    a('s_lshl_b32 s3, s3, 2')
    a('s_add_u32 s3, s3, s5')
    a('s_lshr_b32 s4, s4, 2')
    a('s_and_b32 s60, s2, 7')
    a('s_lshr_b32 s61, s2, 3')
    a('s_mul_i32 s60, s60, 23')
    a('s_add_u32 s60, s60, s61')
    a('s_and_b32 s61, s60, 7')
    a('s_lshr_b32 s60, s60, 3')
    a('s_waitcnt lgkmcnt(0)')
    srd(a, 44, P_CKV, 2048 * 1024)
    a('s_cmp_lt_u32 s3, 16')
    a(f's_cselect_b32 s48, s{P_WUK}, s{P_WUV}')
    a(f's_cselect_b32 s49, s{P_WUK+1}, s{P_WUV+1}')
    csel(a, 's5', f'0x{WS_K:x}', f'0x{WS_V:x}')
    a('s_and_b32 s49, s49, 0xffff')
    a(f's_mov_b32 s50, 0x{512*8192:x}')
    a('s_mov_b32 s51, 0x20000')
    a(f's_add_u32 s52, s{P_WS}, s5')
    a(f's_addc_u32 s53, s{P_WS+1}, 0')
    a('s_and_b32 s53, s53, 0xffff')
    a(f's_mov_b32 s54, 0x{16*MB:x}')
    a('s_mov_b32 s55, 0x20000')
    a('s_and_b32 s3, s3, 15')
    a('s_lshl_b32 s65, s4, 18')
    a('s_lshl_b32 s66, s3, 9')
    a('s_mov_b32 s67, 8192')
    a(f's_mov_b32 s68, {32*8192}')
    srd(a, 8, P_WS, 2048 * 1024, WS_XN)
    a('s_cmp_lt_u32 s60, 16')
    a(f's_cselect_b32 s12, s{P_WQ}, s{P_W1}')
    a(f's_cselect_b32 s13, s{P_WQ+1}, s{P_W1+1}')
    csel(a, 's14', f'0x{512*8192:x}', f'0x{512*3584:x}')
    csel(a, 's62', '8192', '3584')
    csel(a, 's63', f'{32*8192}', f'{32*3584}')
    csel(a, 's6', '0', '1')
    a('s_mov_b32 s15, 0x20000')
    a('s_and_b32 s13, s13, 0xffff')
    a('s_cmp_lt_u32 s2, 184')
    a('s_cselect_b32 s10, s10, 0')
    a('s_cselect_b32 s14, s14, 0')
    a('s_and_b32 s60, s60, 15')
    a('s_lshl_b32 s78, s61, 18')
    a('s_lshl_b32 s79, s60, 9')
    srd(a, 56, P_B1, 1792 * 2)
    gemm_setup(a, 256, 1024)
    w_voffsets(a, 256, 62, 20)
    PB = dict(act=8, w=12, s_act=78, s_w=79, s_wstep=63, vw=20)

    def qkv_offsets(sn, sm):
        a(f's_lshl_b32 s72, s{sn}, 8')
        a('s_lshl_b32 s73, s69, 6')
        a('s_add_u32 s72, s72, s73')
        a('s_lshr_b32 s73, s72, 7')
        a('s_lshl_b32 s75, s73, 19')
        a('s_and_b32 s73, s72, 127')
        a('s_lshl_b32 s73, s73, 1')
        a('s_add_u32 s75, s75, s73')
        a(f's_lshl_b32 s73, s{sm}, 16')
        a('s_add_u32 s75, s75, s73')
        a('s_lshl_b32 s73, s70, 15')
        a('s_add_u32 s75, s75, s73')

    later = []

    def epi_a():
        qkv_offsets(3, 4)
        xp_setup(a, 131072, 256)
        later.extend(xp_epilogue(a, 4, 256, pack_plain(a, 4), defer=True))
        a('s_cmp_ge_u32 s2, 184')
        a('s_cbranch_scc1 K1_TAILA')

    def extra(k):
        return [later[k]] if k < len(later) else []

    gemm_main(a, 256, [dict(nst=16, params=PA, mid_hook=epi_a), dict(nst=16, params=PB, extra=extra)])
    a('s_cmp_eq_u32 s6, 1')
    csel(a, 's5', f'0x{WS_CH:x}', f'0x{WS_Q:x}')
    csel(a, 's54', f'0x{CH_BYTES:x}', f'0x{16*MB:x}')
    a(f's_add_u32 s52, s{P_WS}, s5')
    a(f's_addc_u32 s53, s{P_WS+1}, 0')
    a('s_and_b32 s53, s53, 0xffff')
    a('s_cmp_eq_u32 s6, 1')
    a('s_cbranch_scc1 K2_FFN')
    qkv_offsets(60, 61)
    a('s_mov_b32 s77, 0x3e0293ee')
    for i in range(128):
        a(f'v_mul_f32 v{128+i}, s77, v{128+i}')
    xp_epilogue(a, 4, 256, pack_plain(a, 4))
    a('s_branch K1_PEND')
    a.label('K2_FFN')
    a('s_nop 15')
    a('s_lshl_b32 s72, s60, 8')
    a('s_lshl_b32 s73, s69, 6')
    a('s_add_u32 s72, s72, s73')
    a('s_lshl_b32 s77, s72, 1')
    a('s_lshl_b32 s73, s61, 8')
    a('s_lshl_b32 s75, s70, 7')
    a('s_add_u32 s73, s73, s75')
    a(f's_mul_i32 s75, s73, {LDCH}')
    a('s_add_u32 s75, s75, s77')
    a('s_add_u32 s75, s75, 8192')
    a.vm = []
    a.lg = []
    epilogue_ffn2(a)
    a.label('K1_PEND')
    if PROF:
        a('s_waitcnt vmcnt(0)')
    stamp(a)
    stamp_dump(a, 64)
    a.label('K1_END')
    a('s_endpgm')
    a.label('K1_TAILA')
    a('s_nop 15')
    for f in later:
        f()
    a('s_sub_u32 s3, s2, 184')
    a('s_lshl_b32 s3, s3, 9')
    a('v_add_u32 v3, s3, v0')
    a('v_lshlrev_b32 v3, 7, v3')
    srd(a, 44, P_WO, 4 * MB)
    srd(a, 48, P_W2, 1792 * 1024)
    a('buffer_load_dword v5, v3, s[44:47], 0 offen')
    a('buffer_load_dword v5, v3, s[44:47], 0 offen offset:64')
    a('buffer_load_dword v5, v3, s[48:51], 0 offen')
    a('buffer_load_dword v5, v3, s[48:51], 0 offen offset:64')
    a('s_waitcnt vmcnt(0)')
    a('s_branch K1_PEND')
    return name, kernel_desc(name, 256)


def k4_out(a):
    name = 'k4_out_kernel'
    kernel_header(a, name)
    a.reset_counters()
    a('s_cmp_ge_u32 s2, 256')
    a('s_cbranch_scc1 K4_END')
    stamp(a)
    load_kernargs(a)
    a('s_and_b32 s3, s2, 7')
    a('s_lshr_b32 s4, s2, 3')
    a('s_and_b32 s5, s4, 3')
    a('s_lshr_b32 s4, s4, 2')
    a('s_waitcnt lgkmcnt(0)')
    srd(a, 44, P_WS, CH_BYTES, WS_CH)
    srd(a, 52, P_WS, NSPLIT * 2 * MB, WS_PART)
    a('s_and_b32 s27, s27, 0xffff')
    a('s_and_b32 s35, s35, 0xffff')
    a('s_mov_b32 s51, 0x20000')
    a('s_mul_i32 s6, s3, 736')
    a(f's_mul_i32 s65, s4, {256*LDCH}')
    a('s_lshl_b32 s72, s6, 1')
    a('s_add_u32 s65, s65, s72')
    a('s_lshl_b32 s7, s5, 8')
    a('s_mov_b32 s67, 1024')
    a('s_mov_b32 s68, 0')
    gemm_setup(a, 128, LDCH)

    def whook(s):
        a('s_cmp_lt_u32 s6, 4096')
        a(f's_cselect_b32 s48, s{P_WO}, s{P_W2}')
        a(f's_cselect_b32 s49, s{P_WO+1}, s{P_W2+1}')
        csel(a, 's50', f'0x{4096*1024:x}', f'0x{1792*1024:x}')
        csel(a, 's72', f'0', f'4096')
        a('s_sub_u32 s72, s6, s72')
        a('s_lshl_b32 s66, s72, 10')
        a('s_add_u32 s66, s66, s7')
        a('s_add_u32 s6, s6, 32')
    gemm_main(a, 128, [dict(nst=23, params=PA, w_stage_hook=whook)])
    a('s_lshl_b32 s75, s3, 21')
    a('s_lshl_b32 s72, s4, 18')
    a('s_add_u32 s75, s75, s72')
    a('s_lshl_b32 s72, s70, 16')
    a('s_add_u32 s75, s75, s72')
    a('s_lshl_b32 s72, s5, 8')
    a('s_add_u32 s75, s75, s72')
    a('s_lshl_b32 s72, s69, 7')
    a('s_add_u32 s75, s75, s72')
    xp_setup(a, 98304, 1024)
    xp_epilogue(a, 2, 1024, pack_plain(a, 2))
    a.label('K4_PEND')
    if PROF:
        a('s_waitcnt vmcnt(0)')
    stamp(a)
    stamp_dump(a, 64)
    a.label('K4_END')
    a('s_endpgm')
    return name, kernel_desc(name, 192)


def k5_red(a):
    name = 'k5_red_kernel'
    kernel_header(a, name)
    a.reset_counters()
    a('s_cmp_ge_u32 s2, 512')
    a('s_cbranch_scc1 K5_END')
    stamp(a)
    load_kernargs(a)
    a('s_lshl_b32 s3, s2, 8')
    a('v_add_u32 v1, s3, v0')
    a('v_lshlrev_b32 v2, 4, v1')
    a('v_lshlrev_b32 v3, 5, v1')
    a('v_and_b32 v4, 63, v1')
    a('v_lshlrev_b32 v4, 4, v4')
    a('s_waitcnt lgkmcnt(0)')
    srd(a, 44, P_WS, NSPLIT * 2 * MB, WS_PART)
    srd(a, 48, P_X, 2 * MB)
    srd(a, 52, P_OUT, 2 * MB)
    srd(a, 56, P_B2, 1024)
    a('buffer_load_dwordx4 v[8:11], v2, s[48:51], 0 offen', tag='x')
    a('buffer_load_dwordx4 v[12:15], v4, s[56:59], 0 offen', tag='x')
    for s in range(NSPLIT):
        a(f's_mov_b32 s4, 0x{s*2*MB:x}')
        a(f'buffer_load_dwordx4 v[{16+s*4}:{19+s*4}], v2, s[44:47], s4 offen', tag=('p', s))
    a.wait_vm('x')
    for i in range(4):
        a(f'v_lshlrev_b32 v{96+2*i}, 16, v{8+i}')
        a(f'v_and_b32 v{97+2*i}, 0xffff0000, v{8+i}')
        a(f'v_lshlrev_b32 v{104+2*i}, 16, v{12+i}')
        a(f'v_and_b32 v{105+2*i}, 0xffff0000, v{12+i}')
    for i in range(8):
        a(f'v_add_f32 v{96+i}, v{96+i}, v{104+i}')
    for s in range(NSPLIT):
        a.wait_vm(('p', s))
        for i in range(4):
            a(f'v_lshlrev_b32 v104, 16, v{16+s*4+i}')
            a(f'v_and_b32 v105, 0xffff0000, v{16+s*4+i}')
            a(f'v_add_f32 v{96+2*i}, v{96+2*i}, v104')
            a(f'v_add_f32 v{97+2*i}, v{97+2*i}, v105')
    for i in range(4):
        a(f'v_cvt_pk_bf16_f32 v{8+i}, v{96+2*i}, v{97+2*i}')
    a(f'buffer_store_dwordx4 v[8:11], v2, s[52:55], 0 offen {STMOD}')
    if PROF:
        a('s_waitcnt vmcnt(0)')
        a('v_lshrrev_b32 v2, 6, v0')
        a('v_readfirstlane_b32 s64, v2')
    stamp(a)
    stamp_dump(a, 64)
    a.label('K5_END')
    a('s_endpgm')
    return name, kernel_desc(name, 112)


def main():
    from attn import k3_attn
    a = Asm()
    descs = []
    launches = []
    n, d = k0_ln(a); descs.append(d); launches.append((n, 512, 256, 0))
    n, d = k12_proj(a); descs.append(d); launches.append((n, 256, 512, 163840))
    n, d = k3_attn(a); descs.append(d); launches.append((n, 256, 512, 163840))
    n, d = k4_out(a); descs.append(d); launches.append((n, 256, 512, 131072))
    n, d = k5_red(a); descs.append(d); launches.append((n, 512, 256, 0))
    hdr = open(f'cdna_kernels/{NAME}.s.ref').read().split('; @launch')[0]
    out = hdr
    for (n, g, b, l) in launches:
        out += f'; @launch kernel={n} grid=({g},1,1) block=({b},1,1) lds={l}\n'
    out += '.amdgcn_target "amdgcn-amd-amdhsa--gfx950"\n'
    out += a.finalize()
    out += ''.join(descs)
    path = sys.argv[1] if len(sys.argv) > 1 else f'cdna_kernels/{NAME}.s'
    open(path, 'w').write(out)
    print('wrote', path, len(out), 'bytes')


if __name__ == '__main__':
    main()
```
